```python
import torch

def _softmax(x, axis=-1):
    return torch.softmax(x, dim=axis)
def _gelu(x):
    return torch.nn.functional.gelu(x, approximate="tanh")
def _silu(x):
    return torch.nn.functional.silu(x)
def _sigmoid(x):
    return torch.sigmoid(x)
def _layernorm(x, axis=-1, eps=1e-5):
    m = x.mean(dim=axis, keepdim=True)
    v = x.var(dim=axis, keepdim=True, unbiased=False)
    return (x - m) / torch.sqrt(v + eps)
def _scatter_add(tgt, idx, src, axis=0):
    return tgt.clone().index_add_(axis, idx, src)
def _segment_sum(src, seg, n):
    out = torch.zeros((n,) + src.shape[1:], dtype=src.dtype)
    return out.index_add_(0, seg, src)
def _pad(x, pw):
    flat = tuple(v for pair in reversed(pw) for v in pair)
    return torch.nn.functional.pad(x, flat)

kernel_name = 'parallel_sum__mha_block_cached__dense_activation_relu__decode'

def setup_inputs():

    _w = (lambda a: (lambda t: t.to(torch.bfloat16) if t.is_floating_point() else t)(torch.as_tensor(a)))
    def _A_setup():
        B, Sq, D = 2, 1, 640
        H, Sk, Dh = 32, 8192, 192
        return {
            "x": _w((lambda *s: torch.randn(*s, dtype=torch.bfloat16) * 0.05)(B, Sq, D)),
            "k_cache": _w((lambda *s: torch.randn(*s, dtype=torch.bfloat16) * 3.2)(B, H, Sk, Dh)),
            "v_cache": _w((lambda *s: torch.randn(*s, dtype=torch.bfloat16) * 1.6)(B, H, Sk, Dh)),
            "wq": _w((lambda *s: torch.randn(*s, dtype=torch.bfloat16) * 3.2)(D, H * Dh) * (D ** -0.5)),
            "wo": _w((lambda *s: torch.randn(*s, dtype=torch.bfloat16) * 1.6)(H * Dh, D) * ((H * Dh) ** -0.5)),
        }
    _A_in = _A_setup()

    def _B_setup():
        B, S, D, Dff = 2, 1, 640, 1536
        return {
            "x": _w((lambda *s: torch.randn(*s, dtype=torch.bfloat16) * 0.05)(B, S, D)),
            "w1": _w((lambda *s: torch.randn(*s, dtype=torch.bfloat16) * 0.05)(D, Dff)),
            "w2": _w((lambda *s: torch.randn(*s, dtype=torch.bfloat16) * 0.05)(Dff, D)),
        }
    _B_in = _B_setup()

    return {
        "A_x": _A_in["x"],
        "A_k_cache": _A_in["k_cache"],
        "A_v_cache": _A_in["v_cache"],
        "A_wq": _A_in["wq"],
        "A_wo": _A_in["wo"],
        "B_x": _B_in["x"],
        "B_w1": _B_in["w1"],
        "B_w2": _B_in["w2"],
    }

def reference(A_x, A_k_cache, A_v_cache, A_wq, A_wo, B_x, B_w1, B_w2):
    def _A_ref(x, k_cache, v_cache, wq, wo):
        B, Sq, D = x.shape
        H, Dh = 32, 192
        q = (lambda x, *d: x.permute(*d))((x @ wq).reshape(B, Sq, H, Dh), 0, 2, 1, 3)
        scores = torch.einsum("bhqd,bhkd->bhqk", q, k_cache) * (Dh ** -0.5)
        p = _softmax(scores, axis=-1)
        o = torch.einsum("bhqk,bhkd->bhqd", p, v_cache)
        return (lambda x, *d: x.permute(*d))(o, 0, 2, 1, 3).reshape(B, Sq, H * Dh) @ wo

    def _B_ref(x, w1, w2):
        h = torch.einsum("bsd,df->bsf", x, w1)
        zero = torch.zeros_like(h)
        h = torch.maximum(h, zero)
        return torch.einsum("bsf,fd->bsd", h, w2)

    x = A_x
    xn = _layernorm(x, axis=-1)
    return x + _A_ref(xn, A_k_cache, A_v_cache, A_wq, A_wo) + _B_ref(xn, B_w1, B_w2)
```

```python
import re
TRANS = ("v_exp_f32","v_log_f32","v_rcp_f32","v_rsq_f32","v_sqrt_f32","v_sin_f32","v_cos_f32","v_rcp_iflag_f32")
def regs_of(tok):
    tok=tok.strip()
    tok=tok.lstrip("-")
    m=re.fullmatch(r"abs\((.*)\)",tok)
    if m: tok=m.group(1)
    m=re.fullmatch(r"\|(.*)\|",tok)
    if m: tok=m.group(1)
    m=re.fullmatch(r"([vas])(\d+)",tok)
    if m: return {(m.group(1),int(m.group(2)))}
    m=re.fullmatch(r"([vas])\[(\d+):(\d+)\]",tok)
    if m: return {(m.group(1),i) for i in range(int(m.group(2)),int(m.group(3))+1)}
    if tok=="vcc": return {("s","vcc_lo"),("s","vcc_hi")}
    if tok in("vcc_lo","vcc_hi"): return {("s",tok)}
    if tok=="exec": return {("s","exec_lo"),("s","exec_hi")}
    if tok=="m0": return {("s","m0")}
    return set()
class Ins:
    def __init__(s,text):
        s.text=text
        t=text.split(";")[0].strip()
        s.label = t.endswith(":")
        s.directive = t.startswith(".") and not s.label
        s.empty = (t=="")
        s.op=""; s.dst=set(); s.src=set(); s.kind="none"; s.srcA=set(); s.srcB=set(); s.srcC=set(); s.dpp=False; s.data=set()
        if s.label or s.directive or s.empty: return
        parts=t.split(None,1)
        s.op=parts[0]
        rest=parts[1] if len(parts)>1 else ""
        ops=[]; depth=0; cur=""
        for ch in rest:
            if ch in "[(": depth+=1
            if ch in "])": depth-=1
            if ch=="," and depth==0: ops.append(cur.strip()); cur=""
            else: cur+=ch
        if cur.strip(): ops.append(cur.strip())
        mods=""
        if ops:
            l=ops[-1].split(None,1)
            ops[-1]=l[0]; mods=l[1] if len(l)>1 else ""
        s.mods=mods; s.ops=ops
        op=s.op
        R=[regs_of(x) for x in ops]
        U=lambda L: set().union(*L) if L else set()
        if op.startswith("v_mfma"):
            s.kind="mfma"; s.dst=R[0]; s.srcA=R[1]; s.srcB=R[2]; s.srcC=R[3]; s.src=U(R[1:])
            s.passes = 8 if "32x32" in op else 4
        elif op.startswith("v_"):
            s.kind="valu"
            s.dpp = op.endswith("_dpp") or any(k in mods for k in("quad_perm","row_","wave_"))
            base=op.replace("_e32","").replace("_e64","").replace("_dpp","").replace("_sdwa","")
            s.base=base
            if "permlane" in op and "swap" in op:
                s.dst=U(R[:2]); s.src=U(R[:2])
            elif base.startswith("v_add_co") or base.startswith("v_sub_co") or base.startswith("v_addc_co") or base.startswith("v_subb_co") or base.startswith("v_div_scale") or base.startswith("v_mad_u64"):
                s.dst=U(R[:2]); s.src=U(R[2:])
            elif base=="v_nop":
                pass
            else:
                s.dst=R[0]; s.src=U(R[1:])
                if base.startswith("v_fmac") or base.startswith("v_dot2c") or base.startswith("v_writelane") or s.dpp: s.src|=R[0]
                if base.startswith("v_cmpx"): s.dst|=regs_of("exec")
                if base.startswith("v_dot2c"): s.srcC=R[0]; s.srcA=R[1]; s.srcB=R[2]
                elif base.startswith("v_dot"): s.srcC=R[3]; s.srcA=R[1]; s.srcB=R[2]
        elif op.startswith("buffer_") or op.startswith("global_") or op.startswith("flat_"):
            s.kind="vmem"
            if op.startswith("buffer_inv") or op.startswith("buffer_wbl2"): return
            lds = (" lds" in " "+mods) or "_lds_" in op
            s.ldsdma=lds
            if "load" in op and not lds:
                s.dst=R[0]; s.src=U(R[1:])
            elif "atomic" in op and "sc0" in mods:
                s.dst=R[0]; s.src=U(R)
            else:
                s.src=U(R)
                if "store" in op and ("x3" in op or "x4" in op):
                    s.data = R[0] if op.startswith("buffer_") else R[1]
        elif op.startswith("ds_"):
            s.kind="ds"
            if "read" in op or "permute" in op or "swizzle" in op or "rtn" in op:
                s.dst=R[0]; s.src=U(R[1:])
            else: s.src=U(R)
        elif op.startswith("s_"):
            s.kind="salu"
            if op.startswith("s_cbranch") or op=="s_branch" or op=="s_setpc_b64" or op=="s_endpgm": s.kind="branch"
            elif op.startswith("s_cmp") or op in("s_waitcnt","s_nop","s_barrier","s_sleep","s_setprio"): s.src=U(R)
            else:
                s.dst=R[0] if R else set(); s.src=U(R[1:])
                if "saveexec" in op: s.dst|=regs_of("exec")
    def states(s):
        if s.label or s.directive or s.empty: return 0
        if s.op=="s_nop": return int(s.ops[0])+1
        return 1
def isv(r): return r[0] in "va"
def need(p,c):
    n=0
    if p.kind=="valu":
        vw={r for r in p.dst if isv(r)}; sw={r for r in p.dst if r[0]=="s"}
        isdot=p.base.startswith("v_dot")
        if c.kind=="vmem" and sw&c.src: n=max(n,5)
        if c.kind=="valu":
            if c.dpp and vw&c.src: n=max(n,2)
            if c.dpp and ("s","exec_lo") in sw: n=max(n,5)
            if sw&c.src: n=max(n,4 if ("readlane" in c.op or "writelane" in c.op) else 2)
            if c.base=="v_cndmask_b32" and ("s","vcc_lo") in sw: n=max(n,2)
            if c.base.startswith("v_div_fmas") and ("s","vcc_lo") in sw: n=max(n,4)
            if ("readlane" in c.op or "readfirstlane" in c.op) and vw&c.src: n=max(n,1)
            if ("readlane" in c.op or "readfirstlane" in c.op or "writelane" in c.op or "permlane" in c.op) and ("s","exec_lo") in sw: n=max(n,4)
            if p.base in TRANS and c.base not in TRANS and vw&(c.src|c.dst): n=max(n,1)
            if p.base in TRANS and vw&c.src: n=max(n,1)
            if "permlane" in c.op and vw&c.src: n=max(n,2)
            if ("sdwa" in p.op or "op_sel" in p.mods) and vw&(c.src|c.dst): n=max(n,1)
        if c.kind=="mfma":
            if vw&c.src: n=max(n,3 if isdot else 2)
            if ("s","exec_lo") in sw: n=max(n,4)
        if isdot:
            if c.kind=="valu" and c.base==p.base:
                if vw&(c.srcA|c.srcB): n=max(n,3)
            elif vw&(c.src|c.dst): n=max(n,3)
    elif p.kind=="mfma":
        P=p.passes
        full={4:8,8:12}[P]; part={4:6,8:10}[P]; war={4:3,8:7}[P]
        if c.kind=="mfma":
            if p.dst&(c.srcA|c.srcB): n=max(n,full)
            if p.dst&c.srcC and not (p.dst==c.srcC and c.passes==P): n=max(n,part)
            if p.dst&c.dst and not (p.dst==c.srcC and c.passes==P): n=max(n,part)
        elif c.kind in("valu","vmem","ds"):
            if p.dst&(c.src|c.dst): n=max(n,full)
            if c.kind=="valu" and p.srcC&c.dst: n=max(n,war)
    elif p.kind=="vmem":
        if p.data and c.kind in("valu","mfma") and p.data&c.dst: n=max(n,2)
        elif p.data and p.data&c.dst: n=max(n,1)
    elif p.kind=="salu":
        if ("s","m0") in p.dst and c.kind=="vmem" and getattr(c,"ldsdma",False): n=max(n,1)
    return n
def worst(p):
    if p.kind=="valu":
        if any(r[0]=="s" for r in p.dst): return 5
        return 3 if p.base.startswith("v_dot") else 2
    if p.kind=="mfma": return {4:8,8:12}[p.passes]
    if p.kind=="vmem" and p.data: return 2
    if p.kind=="salu" and ("s","m0") in p.dst: return 1
    return 0
class Asm:
    def __init__(s): s.lines=[]
    def __call__(s,*ls):
        for l in ls:
            for x in l.split("\n"): s.lines.append(x)
    def finalize(s):
        out=[]; hist=[]
        nn=0
        for l in s.lines:
            c=Ins(l)
            if c.directive or c.empty or c.label:
                out.append(l); continue
            pad=0
            for p,d in hist:
                if c.kind=="branch" and c.op!="s_endpgm": pad=max(pad,worst(p)-d-1)
                else: pad=max(pad,need(p,c)-d)
            while pad>0:
                k=min(pad,16); out.append(f"    s_nop {k-1}"); hist=[(p,d+k) for p,d in hist]; pad-=k; nn+=1
            out.append("    "+l.strip() if not l.startswith(" ") else l)
            st=c.states()
            hist=[(p,d+st) for p,d in hist if d+st<20]
            hist.append((c,0))
        return "\n".join(out)+"\n"
```

```python
import sys, json
from asmlib import Asm
KN = "parallel_sum__mha_block_cached__dense_activation_relu__decode_kernel"
HDR = open("parallel_sum__mha_block_cached__dense_activation_relu__decode.s.ref").read().split("; Override launch")[0]

LOG2E = "0x3fb8aa3b"
SCALE = "0x3d93cd3a"
INV640 = "0x3acccccd"
EPS = "0x3727c5ac"
WS_O = 0
WS_Y = 262144
WS_Z = WS_Y+163840
WS_STAMP = 1<<20
WS_SIZE = 4<<20
L_QP=0
L_QB=6144
L_OP=8192
L_ML=15360
L_OD=15616
L_YP=17408
LDS_SIZE=24576

class VM:
    def __init__(s,a): s.a=a; s.q=[]
    def op(s,text,tag): s.a(text); s.q.append(tag)
    def wait(s,tag):
        idx=max(i for i,t in enumerate(s.q) if t==tag)
        n=len(s.q)-1-idx
        s.a(f"s_waitcnt vmcnt({min(n,63)})"); s.q=s.q[idx+1:]

def gen(W=4, kvflags="nt", wqflags="nt", woflags="nt", mlpflags="nt", stamps=0):
    G=8; S=8; NIT=8
    a=Asm()
    a(HDR.rstrip("\n"))
    a(f"; @launch grid=(280,1,1) block=(256,1,1) lds={LDS_SIZE}")
    a('.amdgcn_target "amdgcn-amd-amdhsa--gfx950"',".text",f".globl {KN}",".p2align 8",f".type {KN},@function",f"{KN}:")
    sX,sK,sV,sWA,sWB,sWS,sDBG,sOUT=4,8,12,16,20,24,28,32
    srd=lambda r: f"s[{r}:{r+3}]"
    sWAVE,sH,sB,sS,sKo,sVo,sIT,sT0,sT1,sT2=3,36,37,38,39,40,41,42,43,44
    sSPIN=45
    nstamp=[0]
    def stamp():
        if stamps:
            k=nstamp[0]; nstamp[0]+=1
            a(f"s_memrealtime s[{64+2*k}:{65+2*k}]")
    def allsum(v,t):
        a(f"v_add_f32_dpp v{v}, v{v}, v{v} quad_perm:[1,0,3,2] row_mask:0xf bank_mask:0xf")
        a(f"v_add_f32_dpp v{v}, v{v}, v{v} quad_perm:[2,3,0,1] row_mask:0xf bank_mask:0xf")
        a(f"v_add_f32_dpp v{v}, v{v}, v{v} row_half_mirror row_mask:0xf bank_mask:0xf")
        grpred(v,t,"add")
    def grpred(v,t,op):
        a(f"v_{op}_f32_dpp v{v}, v{v}, v{v} row_ror:8 row_mask:0xf bank_mask:0xf")
        a(f"v_mov_b32 v{t}, v{v}")
        a(f"v_permlane16_swap_b32 v{t}, v{v}")
        a(f"v_{op}_f32 v{v}, v{t}, v{v}")
        a(f"v_mov_b32 v{t}, v{v}")
        a(f"v_permlane32_swap_b32 v{t}, v{v}")
        a(f"v_{op}_f32 v{v}, v{t}, v{v}")
    def rnd(v):
        a(f"v_cvt_pk_bf16_f32 v{v}, v{v}, v{v}")
        a(f"v_and_b32 v{v}, 0xffff0000, v{v}")
    def layernorm(st, own, XD, t):
        for k in range(5):
            a(f"v_lshlrev_b32 v{t+2*k}, 16, v{st+k}")
            a(f"v_and_b32 v{t+2*k+1}, 0xffff0000, v{st+k}")
        s_=t+10; u=t+11; mean=t+12; rd=t+13
        a(f"v_add_f32 v{s_}, v{t}, v{t+1}")
        for k in range(2,10): a(f"v_add_f32 v{s_}, v{s_}, v{t+k}")
        allsum(s_,u)
        a(f"v_mul_f32 v{mean}, {INV640}, v{s_}")
        for k in range(10): a(f"v_sub_f32 v{t+k}, v{t+k}, v{mean}")
        a(f"v_mul_f32 v{s_}, v{t}, v{t}")
        for k in range(1,10): a(f"v_fmac_f32 v{s_}, v{t+k}, v{t+k}")
        allsum(s_,u)
        a(f"v_mul_f32 v{s_}, {INV640}, v{s_}")
        rnd(s_); a(f"v_add_f32 v{s_}, {EPS}, v{s_}"); rnd(s_)
        a(f"v_sqrt_f32 v{s_}, v{s_}"); rnd(s_)
        a(f"v_rcp_f32 v{rd}, v{s_}")
        rnd(mean)
        for k in range(10):
            a(f"v_lshlrev_b32 v{t}, 16, v{own+k}")
            a(f"v_and_b32 v{t+1}, 0xffff0000, v{own+k}")
            a(f"v_sub_f32 v{t}, v{t}, v{mean}")
            a(f"v_sub_f32 v{t+1}, v{t+1}, v{mean}")
            a(f"v_cvt_pk_bf16_f32 v{t+1}, v{t}, v{t+1}")
            a(f"v_lshlrev_b32 v{t}, 16, v{t+1}")
            a(f"v_and_b32 v{t+1}, 0xffff0000, v{t+1}")
            a(f"v_mul_f32 v{t}, v{t}, v{rd}")
            a(f"v_mul_f32 v{t+1}, v{t+1}, v{rd}")
            a(f"v_cvt_pk_bf16_f32 v{XD+2*k}, v{t}, v{t}")
            a(f"v_cvt_pk_bf16_f32 v{XD+2*k+1}, v{t+1}, v{t+1}")
    a("s_cmp_ge_u32 s2, 280","s_cbranch_scc1 L_end")
    stamp()
    a(f"s_load_dwordx2 s[{sX}:{sX+1}], s[0:1], 0")
    a(f"s_load_dwordx2 s[{sWS}:{sWS+1}], s[0:1], 80")
    a(f"s_load_dwordx2 s[{sDBG}:{sDBG+1}], s[0:1], 72")
    a(f"s_load_dwordx2 s[{sOUT}:{sOUT+1}], s[0:1], 64")
    a(f"s_load_dwordx2 s[{sK}:{sK+1}], s[0:1], 8")
    a(f"s_load_dwordx2 s[{sV}:{sV+1}], s[0:1], 16")
    for r,n in ((sX,2560),(sK,201326592),(sV,201326592),(sWS,WS_SIZE),(sDBG,256),(sOUT,2560)):
        a(f"s_mov_b32 s{r+2}, {n}",f"s_mov_b32 s{r+3}, 0x20000")
    vL,vKo,vM=1,2,4
    a("v_lshrrev_b32 v3, 6, v0",f"v_and_b32 v{vL}, 63, v0",f"v_readfirstlane_b32 s{sWAVE}, v3")
    a(f"v_and_b32 v3, 1, v{vL}","v_cmp_eq_u32 vcc, 1, v3","v_mov_b32 v8, 0xffff","v_mov_b32 v9, 0xffff0000","v_cndmask_b32 v8, v8, v9, vcc")
    a(f"v_bfe_u32 v3, v{vL}, 1, 2")
    for r in range(4):
        a(f"v_cmp_eq_u32 vcc, {r}, v3",f"v_cndmask_b32 v{vM+r}, 0, v8, vcc")
    a("s_cmp_ge_u32 s2, 256","s_cbranch_scc1 L_mlp")
    a(f"s_load_dwordx2 s[{sWA}:{sWA+1}], s[0:1], 24")
    a(f"s_load_dwordx2 s[{sWB}:{sWB+1}], s[0:1], 32")
    for r in (sWA,sWB): a(f"s_mov_b32 s{r+2}, 7864320",f"s_mov_b32 s{r+3}, 0x20000")
    vQ=8; vSC=20; vXD=8; vACC=28; vMX=40; vLS=41; vT=42; vA=48; vWO=56; vRING=104
    a(f"s_and_b32 s{sT0}, s2, 7",f"s_lshr_b32 s{sT1}, s2, 3",f"s_lshr_b32 s{sH}, s{sT1}, 3",f"s_lshl_b32 s{sT0}, s{sT0}, 2",f"s_add_u32 s{sH}, s{sH}, s{sT0}")
    a(f"s_and_b32 s{sS}, s{sT1}, 7",f"s_lshr_b32 s{sB}, s{sS}, 2")
    a(f"s_lshl_b32 s{sT0}, s{sB}, 5",f"s_add_u32 s{sT0}, s{sT0}, s{sH}",f"s_lshl_b32 s{sT0}, s{sT0}, 2",f"s_and_b32 s{sT1}, s{sS}, 3",f"s_add_u32 s{sT0}, s{sT0}, s{sT1}")
    a(f"s_lshl_b32 s{sT0}, s{sT0}, 2",f"s_add_u32 s{sT0}, s{sT0}, s{sWAVE}",f"s_mul_i32 s{sKo}, s{sT0}, 196608",f"s_mov_b32 s{sVo}, s{sKo}")
    vG8=42; vE16=43; vWQo=44; vWOo=45; vXo=46; vXs=47
    a(f"v_lshrrev_b32 v{vG8}, 3, v{vL}",f"v_and_b32 v{vE16}, 7, v{vL}",f"v_lshlrev_b32 v{vE16}, 4, v{vE16}")
    a(f"v_mov_b32 v3, 384",f"v_mad_u32_u24 v{vKo}, v{vG8}, v3, v{vE16}")
    a(f"v_mov_b32 v3, {20*12288}",f"v_mad_u32_u24 v{vWQo}, v{vG8}, v3, v{vE16}")
    a(f"v_mul_u32_u24 v{vXo}, 40, v{vG8}",f"v_lshlrev_b32 v{vXs}, 2, v{vL}")
    a(f"v_lshrrev_b32 v3, 4, v{vL}",f"v_mul_u32_u24 v{vWOo}, {12*1280}, v3",f"v_and_b32 v3, 15, v{vL}",f"v_lshl_add_u32 v{vWOo}, v3, 4, v{vWOo}")
    a(f"v_cmp_gt_u32 vcc, 10, v3",f"v_mov_b32 v3, 0x40000000",f"v_cndmask_b32 v{vWOo}, v3, v{vWOo}, vcc")
    sXo,sXw,sWQo,sWOo,sCl=46,47,48,49,50
    a(f"s_mul_i32 s{sXo}, s{sB}, 1280",f"s_mul_i32 s{sXw}, s{sWAVE}, 320",f"s_add_u32 s{sXw}, s{sXw}, s{sXo}")
    a(f"s_mul_i32 s{sWQo}, s{sWAVE}, {160*12288}",f"s_mul_i32 s{sT0}, s{sH}, 384",f"s_add_u32 s{sWQo}, s{sWQo}, s{sT0}")
    a(f"s_lshl_b32 s{sT0}, s{sH}, 2",f"s_add_u32 s{sT0}, s{sT0}, s{sWAVE}",f"s_mul_i32 s{sWOo}, s{sT0}, {48*1280}",f"s_mul_i32 s{sT0}, s{sS}, 160",f"s_add_u32 s{sWOo}, s{sWOo}, s{sT0}")
    a("s_waitcnt lgkmcnt(0)")
    stamp()
    vm=VM(a)
    vST=56; vOWN=64; vLT=76
    for k in range(5): vm.op(f"buffer_load_dword v{vST+k}, v{vXs}, {srd(sX)}, s{sXo} offen offset:{256*k}","x")
    vm.op(f"buffer_load_dwordx4 v[{vOWN}:{vOWN+3}], v{vXo}, {srd(sX)}, s{sXw} offen","x")
    vm.op(f"buffer_load_dwordx4 v[{vOWN+4}:{vOWN+7}], v{vXo}, {srd(sX)}, s{sXw} offen offset:16","x")
    vm.op(f"buffer_load_dwordx2 v[{vOWN+8}:{vOWN+9}], v{vXo}, {srd(sX)}, s{sXw} offen offset:32","x")
    slot=lambda n: vRING+12*(n%S)
    def ld_wq(n):
        r=slot(n)
        for t in range(3): vm.op(f"buffer_load_dwordx4 v[{r+4*t}:{r+4*t+3}], v{vWQo}, {srd(sWA)}, s{sWQo} offen offset:{128*t} {wqflags}",n)
        a(f"s_add_u32 s{sWQo}, s{sWQo}, 12288")
    def ld_kv(n,isK,track=True):
        r=slot(n); sr=sK if isK else sV; so=sKo if isK else sVo
        for t in range(3):
            txt=f"buffer_load_dwordx4 v[{r+4*t}:{r+4*t+3}], v{vKo}, {srd(sr)}, s{so} offen offset:{128*t} {kvflags}"
            if track: vm.op(txt,n)
            else: a(txt)
        a(f"s_add_u32 s{so}, s{so}, 3072")
    for n in range(-20,-20+S): ld_wq(n)
    a(f"s_lshl_b32 s{sT0}, s{sH}, 3",f"s_add_u32 s{sT0}, s{sT0}, s{sS}",f"s_lshl_b32 s{sCl}, s{sT0}, 10")
    a("v_mov_b32 v48, -1","v_mov_b32 v49, -1","v_mov_b32 v50, -1","v_mov_b32 v51, -1","v_lshlrev_b32 v52, 2, v0")
    vm.op(f"buffer_store_dword v48, v52, {srd(sWS)}, s{sCl} offen sc1","clr")
    vYo=3
    a(f"v_cmp_le_u32 vcc, 20, v0",f"v_mov_b32 v53, {2560-320}",f"v_cndmask_b32 v53, 0, v53, vcc",f"v_lshl_add_u32 v{vYo}, v0, 4, v53")
    a(f"v_cmp_gt_u32 vcc, 40, v0",f"v_mov_b32 v53, 0x40000000",f"v_cndmask_b32 v{vYo}, v53, v{vYo}, vcc")
    sYo=51
    a(f"s_mul_i32 s{sYo}, s{sH}, 5120",f"s_mul_i32 s{sT0}, s{sS}, 320",f"s_add_u32 s{sYo}, s{sYo}, s{sT0}",f"s_add_u32 s{sYo}, s{sYo}, {WS_Y}")
    vm.op(f"buffer_store_dwordx4 v[48:51], v{vYo}, {srd(sWS)}, s{sYo} offen sc1","clr")
    vm.wait("x")
    layernorm(vST,vOWN,vXD,vLT)
    for u in range(12):
        vm.op(f"buffer_load_dwordx4 v[{vWO+4*u}:{vWO+4*u+3}], v{vWOo}, {srd(sWB)}, s{sWOo} offen offset:{1280*(u%3)} {woflags}","wo")
        if u%3==2: a(f"s_add_u32 s{sWOo}, s{sWOo}, 3840")
    stamp()
    def diag(A,P):
        for r in range(4): a(f"v_and_b32 v{A+r}, v{P}, v{vM+r}")
    for n in range(-20,0):
        i=n+20; A=vA+4*(i&1); r=slot(n)
        diag(A,vXD+i)
        vm.wait(n)
        for t in range(3):
            c = "0" if i==0 else f"v[{vACC+4*t}:{vACC+4*t+3}]"
            a(f"v_mfma_f32_16x16x32_bf16 v[{vACC+4*t}:{vACC+4*t+3}], v[{A}:{A+3}], v[{r+4*t}:{r+4*t+3}], {c}")
        if n+S<0: ld_wq(n+S)
        elif n+S<W: ld_kv(n+S,True)
    stamp()
    vPo=42
    a(f"v_lshrrev_b32 v43, 5, v{vL}",f"v_mul_u32_u24 v{vPo}, 768, v43",f"v_and_b32 v43, 7, v{vL}",f"v_lshl_add_u32 v{vPo}, v43, 5, v{vPo}")
    a(f"v_and_b32 v43, 16, v{vL}",f"v_add_u32 v{vPo}, v{vPo}, v43",f"s_mul_i32 s{sT0}, s{sWAVE}, 1536",f"v_add_u32 v{vPo}, s{sT0}, v{vPo}")
    a("s_mov_b32 exec_lo, 0x00ff00ff","s_mov_b32 exec_hi, 0xff00ff00")
    for t in range(3): a(f"ds_write_b128 v{vPo}, v[{vACC+4*t}:{vACC+4*t+3}] offset:{L_QP+256*t}")
    a("s_mov_b64 exec, -1","s_waitcnt lgkmcnt(0)","s_barrier")
    a("v_mov_b32 v43, 1","v_mov_b32 v44, 0","v_cmp_eq_u32 vcc, 0, v0","s_and_saveexec_b64 s[52:53], vcc","s_cbranch_execz L_nosig")
    a(f"buffer_atomic_add v43, v44, {srd(sDBG)}, 0 offen sc1")
    a("L_nosig:","s_mov_b64 exec, -1")
    a(f"v_lshlrev_b32 v43, 4, v{vL}")
    tq=vRING+12*((W)%S) if W<S else None
    for p in range(8): a(f"ds_read_b128 v[{8+4*p}:{11+4*p}], v43 offset:{L_QP+768*p}")
    a("s_waitcnt lgkmcnt(0)")
    for st in (16,8,4):
        for r in range(st): a(f"v_add_f32 v{8+r}, v{8+r}, v{8+st+r}")
    a("v_cvt_pk_bf16_f32 v8, v8, v9","v_cvt_pk_bf16_f32 v9, v10, v11")
    a(f"s_lshl_b32 s{sT0}, s{sWAVE}, 9",f"v_lshl_add_u32 v43, v{vL}, 3, s{sT0}")
    a(f"ds_write_b64 v43, v[8:9] offset:{L_QB}")
    a(f"v_and_b32 v43, 7, v{vL}",f"v_lshl_add_u32 v43, v43, 4, s{sT0}","s_waitcnt lgkmcnt(0)")
    for t in range(3): a(f"ds_read_b128 v[{vQ+4*t}:{vQ+4*t+3}], v43 offset:{L_QB+128*t}")
    for r in range(12): a(f"v_mov_b32 v{vACC+r}, 0")
    a(f"v_mov_b32 v{vMX}, 0xff7fffff",f"v_mov_b32 v{vLS}, 0",f"s_mov_b32 s{sIT}, {NIT}")
    a("s_waitcnt lgkmcnt(0)")
    a("L_loop:")
    for n in range(2*G):
        r=slot(n)
        early = W<S
        def issue():
            m=n+W
            if m==2*G:
                a(f"s_cmp_eq_u32 s{sIT}, 1",f"s_cselect_b32 s{sK+2}, 0, s{sK+2}")
            ld_kv(m, (m<G or m>=2*G), track=False)
        if n>=G:
            g=n-G; A=vA+4*(g&1)
            a(f"v_sub_f32 v{vT+1}, v{vSC+g}, v{vMX}",f"v_mul_f32 v{vT+1}, {LOG2E}, v{vT+1}",f"v_exp_f32 v{vT+1}, v{vT+1}")
            a(f"v_add_f32 v{vLS}, v{vLS}, v{vT+1}",f"v_cvt_pk_bf16_f32 v{vT+1}, v{vT+1}, v{vT+1}")
            diag(A,vT+1)
        else:
            a(f"v_mov_b32 v{vSC+n}, 0")
        a(f"s_waitcnt vmcnt({3*(W-1)})")
        if early: issue()
        if n<G:
            sc=vSC+n
            for i in range(12): a(f"v_dot2c_f32_bf16 v{sc}, v{r+i}, v{vQ+i}")
            if not early: issue()
            a(f"v_add_f32_dpp v{sc}, v{sc}, v{sc} quad_perm:[1,0,3,2] row_mask:0xf bank_mask:0xf")
            a(f"v_add_f32_dpp v{sc}, v{sc}, v{sc} quad_perm:[2,3,0,1] row_mask:0xf bank_mask:0xf")
            a(f"v_add_f32_dpp v{sc}, v{sc}, v{sc} row_half_mirror row_mask:0xf bank_mask:0xf")
            if n&1:
                x,y=sc-1,sc
                a(f"v_cvt_pk_bf16_f32 v{y}, v{x}, v{y}",f"v_lshlrev_b32 v{x}, 16, v{y}",f"v_and_b32 v{y}, 0xffff0000, v{y}")
                a(f"v_mul_f32 v{x}, {SCALE}, v{x}",f"v_mul_f32 v{y}, {SCALE}, v{y}")
                a(f"v_cvt_pk_bf16_f32 v{y}, v{x}, v{y}",f"v_lshlrev_b32 v{x}, 16, v{y}",f"v_and_b32 v{y}, 0xffff0000, v{y}")
            if n==G-1:
                t0,t1=vT+1,vT+2
                a(f"v_max3_f32 v{t0}, v{vSC}, v{vSC+1}, v{vMX}")
                for k in range(2,G,2): a(f"v_max3_f32 v{t0}, v{vSC+k}, v{vSC+k+1}, v{t0}")
                grpred(t0,t1,"max")
                a(f"v_sub_f32 v{t1}, v{vMX}, v{t0}",f"v_mov_b32 v{vMX}, v{t0}",f"v_mul_f32 v{t1}, {LOG2E}, v{t1}",f"v_exp_f32 v{t1}, v{t1}")
                a(f"v_mul_f32 v{vLS}, v{vLS}, v{t1}")
                for k in range(12): a(f"v_mul_f32 v{vACC+k}, v{vACC+k}, v{t1}")
        else:
            for t in range(3):
                a(f"v_mfma_f32_16x16x32_bf16 v[{vACC+4*t}:{vACC+4*t+3}], v[{A}:{A+3}], v[{r+4*t}:{r+4*t+3}], v[{vACC+4*t}:{vACC+4*t+3}]")
            if not early: issue()
    a(f"s_sub_u32 s{sIT}, s{sIT}, 1",f"s_cmp_lg_u32 s{sIT}, 0","s_cbranch_scc1 L_loop")
    stamp()
    vCT=44
    a("v_mov_b32 v45, 0",f"buffer_load_dword v{vCT}, v45, {srd(sDBG)}, 0 offen sc1")
    grpred(vLS,43,"add")
    a("s_mov_b32 exec_lo, 0x00ff00ff","s_mov_b32 exec_hi, 0xff00ff00")
    for t in range(3): a(f"ds_write_b128 v{vPo}, v[{vACC+4*t}:{vACC+4*t+3}] offset:{L_OP+256*t}")
    a(f"s_lshl_b32 s{sT0}, s{sWAVE}, 3",f"v_mov_b32 v43, s{sT0}",f"ds_write_b64 v43, v[{vMX}:{vLS}] offset:{L_ML}")
    a("s_mov_b64 exec, -1","s_waitcnt lgkmcnt(0)","s_barrier")
    a(f"s_cmp_eq_u32 s{sWAVE}, 0","s_cbranch_scc0 L_pub_done")
    R=vRING
    a("s_waitcnt vmcnt(1)")
    a(f"v_lshlrev_b32 v43, 4, v{vL}")
    a(f"ds_read_b128 v[{R+32}:{R+35}], v45 offset:{L_ML}",f"ds_read_b128 v[{R+36}:{R+39}], v45 offset:{L_ML+16}")
    for p in range(8): a(f"ds_read_b128 v[{R+4*p}:{R+4*p+3}], v43 offset:{L_OP+768*p}")
    a("s_waitcnt lgkmcnt(8)")
    M=R+40
    a(f"v_max3_f32 v{M}, v{R+32}, v{R+34}, v{R+36}",f"v_max_f32 v{M}, v{M}, v{R+38}")
    for v in range(4): a(f"v_sub_f32 v{R+32+2*v}, v{R+32+2*v}, v{M}")
    for v in range(4): a(f"v_mul_f32 v{R+32+2*v}, {LOG2E}, v{R+32+2*v}")
    for v in range(4): a(f"v_exp_f32 v{R+32+2*v}, v{R+32+2*v}")
    a(f"v_mul_f32 v{M+1}, v{R+32}, v{R+33}")
    for v in range(1,4): a(f"v_fmac_f32 v{M+1}, v{R+32+2*v}, v{R+33+2*v}")
    a("s_waitcnt lgkmcnt(0)")
    for v in range(4):
        for r in range(4): a(f"v_add_f32 v{R+8*v+r}, v{R+8*v+r}, v{R+8*v+4+r}")
    for r in range(4): a(f"v_mul_f32 v{R+r}, v{R+r}, v{R+32}")
    for v in range(1,4):
        for r in range(4): a(f"v_fmac_f32 v{R+r}, v{R+8*v+r}, v{R+32+2*v}")
    a(f"v_cmp_eq_u32 vcc, 48, v{vL}",f"v_cndmask_b32 v{R}, v{R}, v{M}, vcc",f"v_cndmask_b32 v{R+1}, v{R+1}, v{M+1}, vcc")
    for r in range(4): a(f"v_min_u32 v{R+r}, -2, v{R+r}")
    a("s_mov_b32 exec_lo, -1","s_mov_b32 exec_hi, 0x1ffff")
    a(f"buffer_store_dwordx4 v[{R}:{R+3}], v43, {srd(sWS)}, s{sCl} offen sc1")
    a("s_mov_b64 exec, -1")
    a("L_pub_done:")
    stamp()
    a(f"s_mov_b32 s{sSPIN}, 0x100000")
    a("L_ctr:","s_waitcnt vmcnt(0)",f"v_readfirstlane_b32 s{sT0}, v{vCT}",f"s_cmp_ge_u32 s{sT0}, 280","s_cbranch_scc1 L_ctr_ok")
    a(f"s_sub_u32 s{sSPIN}, s{sSPIN}, 1","s_cbranch_scc1 L_end")
    a(f"buffer_load_dword v{vCT}, v45, {srd(sDBG)}, 0 offen sc1","s_branch L_ctr")
    a("L_ctr_ok:")
    a(f"v_cmp_le_u32 vcc, 12, v{vL}",f"v_mov_b32 v43, 4096",f"v_cndmask_b32 v46, 0, v43, vcc")
    a(f"v_mov_b32 v43, {4096-192}",f"v_cndmask_b32 v43, 0, v43, vcc",f"v_lshl_add_u32 v47, v{vL}, 4, v43")
    a(f"s_mul_i32 s{sT0}, s{sWAVE}, 192",f"v_add_u32 v47, s{sT0}, v47",f"s_lshl_b32 s{sT1}, s{sH}, 13")
    a("s_mov_b32 exec_lo, 0xffffff","s_mov_b32 exec_hi, 0")
    a("L_poll1:")
    for q in range(4):
        a(f"buffer_load_dwordx4 v[{R+4*q}:{R+4*q+3}], v47, {srd(sWS)}, s{sT1} offen offset:{1024*q} sc1")
        a(f"buffer_load_dwordx2 v[{R+16+2*q}:{R+17+2*q}], v46, {srd(sWS)}, s{sT1} offen offset:{1024*q+768} sc1")
    a("s_waitcnt vmcnt(0)")
    a(f"v_max3_u32 v43, v{R}, v{R+1}, v{R+2}")
    for k in range(3,23,2): a(f"v_max3_u32 v43, v{R+k}, v{R+k+1}, v43")
    a(f"v_max_u32 v43, v{R+23}, v43","v_cmp_eq_u32 vcc, -1, v43","s_cbranch_vccz L_poll1_ok")
    a(f"s_sub_u32 s{sSPIN}, s{sSPIN}, 1","s_cbranch_scc0 L_poll1","s_endpgm")
    a("L_poll1_ok:")
    stamp()
    M=R+24
    a(f"v_max3_f32 v{M}, v{R+16}, v{R+18}, v{R+20}",f"v_max_f32 v{M}, v{M}, v{R+22}")
    for v in range(4): a(f"v_sub_f32 v{R+16+2*v}, v{R+16+2*v}, v{M}")
    for v in range(4): a(f"v_mul_f32 v{R+16+2*v}, {LOG2E}, v{R+16+2*v}")
    for v in range(4): a(f"v_exp_f32 v{R+16+2*v}, v{R+16+2*v}")
    a(f"v_mul_f32 v{M+1}, v{R+16}, v{R+17}")
    for v in range(1,4): a(f"v_fmac_f32 v{M+1}, v{R+16+2*v}, v{R+17+2*v}")
    a(f"v_rcp_f32 v{M+1}, v{M+1}")
    for r in range(4): a(f"v_mul_f32 v{R+r}, v{R+r}, v{R+16}")
    for v in range(1,4):
        for r in range(4): a(f"v_fmac_f32 v{R+r}, v{R+4*v+r}, v{R+16+2*v}")
    for r in range(4): a(f"v_mul_f32 v{R+r}, v{R+r}, v{M+1}")
    for r in range(4): a(f"v_cvt_pk_bf16_f32 v{R+r}, v{R+r}, v{R+r}")
    a(f"s_mul_i32 s{sT0}, s{sWAVE}, 384",f"v_lshl_add_u32 v43, v{vL}, 4, s{sT0}",f"ds_write_b128 v43, v[{R}:{R+3}] offset:{L_OD}")
    a("s_mov_b64 exec, -1")
    a(f"v_bfe_u32 v43, v{vL}, 3, 1",f"v_mul_u32_u24 v43, 192, v43",f"v_lshrrev_b32 v46, 4, v{vL}",f"v_mad_u32_u24 v43, v46, 48, v43",f"v_add_u32 v43, s{sT0}, v43")
    a("s_waitcnt lgkmcnt(0)")
    for k in range(3): a(f"ds_read_b128 v[{R+4*k}:{R+4*k+3}], v43 offset:{L_OD+16*k}")
    a("s_waitcnt lgkmcnt(0)")
    for u in range(12):
        A=R+16+4*u
        diag(A,R+u)
    for u in range(12):
        A=R+16+4*u
        c="0" if u==0 else f"v[{vACC}:{vACC+3}]"
        a(f"v_mfma_f32_16x16x32_bf16 v[{vACC}:{vACC+3}], v[{A}:{A+3}], v[{vWO+4*u}:{vWO+4*u+3}], {c}")
    a(f"v_lshrrev_b32 v43, 5, v{vL}",f"v_lshlrev_b32 v43, 9, v43",f"v_and_b32 v46, 15, v{vL}",f"v_lshl_add_u32 v43, v46, 5, v43",f"v_and_b32 v46, 16, v{vL}",f"v_add_u32 v43, v43, v46")
    a(f"s_lshl_b32 s{sT0}, s{sWAVE}, 10",f"v_add_u32 v43, s{sT0}, v43",f"ds_write_b128 v43, v[{vACC}:{vACC+3}] offset:{L_YP}")
    a("s_waitcnt lgkmcnt(0)","s_barrier")
    a(f"s_cmp_eq_u32 s{sWAVE}, 0","s_cbranch_scc0 L_fin")
    a(f"v_cmp_le_u32 vcc, 20, v{vL}",f"v_mov_b32 v43, {512-320}",f"v_cndmask_b32 v43, 0, v43, vcc",f"v_lshl_add_u32 v43, v{vL}, 4, v43")
    for v in range(4): a(f"ds_read_b128 v[{R+4*v}:{R+4*v+3}], v43 offset:{L_YP+1024*v}")
    a("s_waitcnt lgkmcnt(0)")
    for r in range(8): a(f"v_add_f32 v{R+r}, v{R+r}, v{R+8+r}")
    for r in range(4): a(f"v_add_f32 v{R+r}, v{R+r}, v{R+4+r}")
    for r in range(4): a(f"v_min_u32 v{R+r}, -2, v{R+r}")
    a(f"buffer_store_dwordx4 v[{R}:{R+3}], v{vYo}, {srd(sWS)}, s{sYo} offen sc1")
    stamp()
    a("s_cmp_lt_u32 s2, 40","s_cbranch_scc0 L_fin")
    a(f"v_lshrrev_b32 v43, 3, v{vL}",f"v_mul_u32_u24 v43, 5120, v43",f"v_and_b32 v46, 7, v{vL}",f"v_lshl_add_u32 v43, v46, 4, v43",f"v_lshlrev_b32 v46, 3, v46")
    a(f"s_lshl_b32 s{sT0}, s2, 7",f"s_add_u32 s{sT1}, s{sT0}, {WS_Z}",f"s_add_u32 s{sT0}, s{sT0}, {WS_Y}",f"s_lshl_b32 s{sT2}, s2, 6")
    Z=R+16; X=R+28
    for k in range(3):
        a(f"buffer_load_dwordx4 v[{Z+4*k}:{Z+4*k+3}], v43, {srd(sWS)}, s{sT1} offen sc1",f"s_add_u32 s{sT1}, s{sT1}, 40960")
    a(f"buffer_load_dwordx2 v[{X}:{X+1}], v46, {srd(sX)}, s{sT2} offen")
    a("L_poll2:",f"s_mov_b32 s{sT1}, s{sT0}")
    for k in range(4):
        a(f"buffer_load_dwordx4 v[{R+4*k}:{R+4*k+3}], v43, {srd(sWS)}, s{sT1} offen sc1",f"s_add_u32 s{sT1}, s{sT1}, 40960")
    a("s_waitcnt vmcnt(0)")
    a(f"v_max3_u32 v47, v{R}, v{R+1}, v{R+2}")
    for k in range(3,15,2): a(f"v_max3_u32 v47, v{R+k}, v{R+k+1}, v47")
    a(f"v_max_u32 v47, v{R+15}, v47","v_cmp_eq_u32 vcc, -1, v47","s_cbranch_vccz L_poll2_ok")
    a(f"s_sub_u32 s{sSPIN}, s{sSPIN}, 1","s_cbranch_scc0 L_poll2","s_endpgm")
    a("L_poll2_ok:")
    stamp()
    for r in range(8): a(f"v_add_f32 v{R+r}, v{R+r}, v{R+8+r}")
    for r in range(4): a(f"v_add_f32 v{R+r}, v{R+r}, v{R+4+r}")
    for r in range(4): a(f"v_add_f32 v{Z+r}, v{Z+r}, v{Z+4+r}")
    for r in range(4): a(f"v_add_f32 v{Z+r}, v{Z+r}, v{Z+8+r}")
    regs=[R+r for r in range(4)]+[Z+r for r in range(4)]
    T=R+32
    for i,v in enumerate(regs): a(f"v_add_f32_dpp v{v}, v{v}, v{v} row_ror:8 row_mask:0xf bank_mask:0xf")
    for sw in ("16","32"):
        for i,v in enumerate(regs): a(f"v_mov_b32 v{T+i}, v{v}")
        for i,v in enumerate(regs): a(f"v_permlane{sw}_swap_b32 v{T+i}, v{v}")
        for i,v in enumerate(regs): a(f"v_add_f32 v{v}, v{T+i}, v{v}")
    for v in regs: rnd(v)
    a(f"v_lshlrev_b32 v{T}, 16, v{X}",f"v_and_b32 v{T+1}, 0xffff0000, v{X}",f"v_lshlrev_b32 v{T+2}, 16, v{X+1}",f"v_and_b32 v{T+3}, 0xffff0000, v{X+1}")
    for r in range(4): a(f"v_add_f32 v{R+r}, v{T+r}, v{R+r}")
    for r in range(4): rnd(R+r)
    for r in range(4): a(f"v_add_f32 v{R+r}, v{R+r}, v{Z+r}")
    a(f"v_cvt_pk_bf16_f32 v{R}, v{R}, v{R+1}",f"v_cvt_pk_bf16_f32 v{R+1}, v{R+2}, v{R+3}")
    a("s_mov_b64 exec, 0xff")
    a(f"buffer_store_dwordx2 v[{R}:{R+1}], v46, {srd(sOUT)}, s{sT2} offen")
    a("s_mov_b64 exec, -1")
    a("L_fin:")
    if stamps:
        stamp()
        a("s_waitcnt lgkmcnt(0)")
        a(f"s_lshl_b32 s{sT0}, s2, 2",f"s_add_u32 s{sT0}, s{sT0}, s{sWAVE}",f"s_lshl_b32 s{sT0}, s{sT0}, 7",f"s_add_u32 s{sT0}, s{sT0}, {WS_STAMP}")
        a("v_mov_b32 v43, 0","s_mov_b64 exec, 1")
        for k in range(nstamp[0]):
            a(f"v_mov_b32 v44, s{64+2*k}",f"v_mov_b32 v45, s{65+2*k}",f"buffer_store_dwordx2 v[44:45], v43, {srd(sWS)}, s{sT0} offen offset:{8*k}","s_nop 1")
    a("s_endpgm")
    a("L_mlp:")
    sU=36
    a(f"s_load_dwordx2 s[{sWA}:{sWA+1}], s[0:1], 48",f"s_load_dwordx2 s[{sWB}:{sWB+1}], s[0:1], 56")
    for r in (sWA,sWB): a(f"s_mov_b32 s{r+2}, 1966080",f"s_mov_b32 s{r+3}, 0x20000")
    a(f"s_sub_u32 s{sU}, s2, 256")
    vXD0=8; vXD1=28; vA=48; vAC=56; vW=96; vTm=76
    o1,o2,oX,oS=176,177,178,179
    a(f"v_lshrrev_b32 v2, 3, v{vL}",f"v_and_b32 v3, 7, v{vL}",f"v_lshlrev_b32 v3, 4, v3")
    a(f"v_mul_u32_u24 v{o1}, {20*3072}, v2",f"v_add_u32 v{o1}, v{o1}, v3",f"v_mul_u32_u24 v{oX}, 40, v2",f"v_lshlrev_b32 v{oS}, 2, v{vL}")
    a(f"v_lshrrev_b32 v2, 4, v{vL}",f"v_mul_u32_u24 v{o2}, {4*1280}, v2",f"v_and_b32 v3, 15, v{vL}",f"v_lshl_add_u32 v{o2}, v3, 4, v{o2}")
    s1,s2_,sxw=37,38,39
    a(f"s_mul_i32 s{s1}, s{sWAVE}, {160*3072}",f"s_lshl_b32 s{sT0}, s{sU}, 7",f"s_add_u32 s{s1}, s{s1}, s{sT0}")
    a(f"s_lshl_b32 s{sT0}, s{sU}, 2",f"s_add_u32 s{sT0}, s{sT0}, s{sWAVE}",f"s_mul_i32 s{s2_}, s{sT0}, {16*1280}")
    a(f"s_mul_i32 s{sxw}, s{sWAVE}, 320")
    a("s_waitcnt lgkmcnt(0)")
    vm=VM(a)
    XS=[180,56]; XO=[186,62]
    for b in range(2):
        for k in range(5): vm.op(f"buffer_load_dword v{XS[b]+k}, v{oS}, {srd(sX)}, 0 offen offset:{1280*b+256*k}","x")
        vm.op(f"buffer_load_dwordx4 v[{XO[b]}:{XO[b]+3}], v{oX}, {srd(sX)}, s{sxw} offen offset:{1280*b}","x")
        vm.op(f"buffer_load_dwordx4 v[{XO[b]+4}:{XO[b]+7}], v{oX}, {srd(sX)}, s{sxw} offen offset:{1280*b+16}","x")
        vm.op(f"buffer_load_dwordx2 v[{XO[b]+8}:{XO[b]+9}], v{oX}, {srd(sX)}, s{sxw} offen offset:{1280*b+32}","x")
    for i in range(20):
        vm.op(f"buffer_load_dwordx4 v[{vW+4*i}:{vW+4*i+3}], v{o1}, {srd(sWA)}, s{s1} offen {mlpflags}",("w1",i))
        a(f"s_add_u32 s{s1}, s{s1}, 3072")
    vm.wait("x")
    layernorm(XS[0],XO[0],vXD0,vTm)
    layernorm(XS[1],XO[1],vXD1,vTm)
    for i in range(20):
        diag(vA,vXD0+i); diag(vA+4,vXD1+i)
        vm.wait(("w1",i))
        for b in range(2):
            c="0" if i==0 else f"v[{vAC+4*b}:{vAC+4*b+3}]"
            a(f"v_mfma_f32_16x16x32_bf16 v[{vAC+4*b}:{vAC+4*b+3}], v[{vA+4*b}:{vA+4*b+3}], v[{vW+4*i}:{vW+4*i+3}], {c}")
        vm.op(f"buffer_load_dwordx4 v[{vW+4*i}:{vW+4*i+3}], v{o2}, {srd(sWB)}, s{s2_} offen offset:{256*(i%5)} {mlpflags}",("w2",i))
        if i%5==4: a(f"s_add_u32 s{s2_}, s{s2_}, 1280")
    a(f"v_lshrrev_b32 v2, 5, v{vL}",f"v_lshlrev_b32 v2, 9, v2",f"v_and_b32 v3, 7, v{vL}",f"v_lshl_add_u32 v2, v3, 5, v2",f"v_and_b32 v3, 16, v{vL}",f"v_add_u32 v2, v2, v3")
    a(f"s_lshl_b32 s{sT0}, s{sWAVE}, 10",f"v_add_u32 v2, s{sT0}, v2")
    a("s_mov_b32 exec_lo, 0x00ff00ff","s_mov_b32 exec_hi, 0xff00ff00")
    for b in range(2): a(f"ds_write_b128 v2, v[{vAC+4*b}:{vAC+4*b+3}] offset:{256*b}")
    a("s_mov_b64 exec, -1","s_waitcnt lgkmcnt(0)","s_barrier")
    a(f"v_bfe_u32 v2, v{vL}, 3, 1",f"v_lshlrev_b32 v2, 8, v2",f"v_and_b32 v3, 48, v{vL}",f"v_add_u32 v2, v2, v3",f"s_lshl_b32 s{sT0}, s{sWAVE}, 6",f"v_add_u32 v2, s{sT0}, v2")
    for p in range(8): a(f"ds_read_b128 v[{8+4*p}:{11+4*p}], v2 offset:{512*p}")
    a("s_waitcnt lgkmcnt(0)")
    for st in (16,8,4):
        for r in range(st): a(f"v_add_f32 v{8+r}, v{8+r}, v{8+st+r}")
    for r in range(4): a(f"v_maximum3_f32 v{8+r}, v{8+r}, 0, 0")
    for r in range(4): a(f"v_cvt_pk_bf16_f32 v{8+r}, v{8+r}, v{8+r}")
    for i in range(4): diag(16+4*i,8+i)
    for i in range(20):
        vm.wait(("w2",i))
        c_=i%5; c="0" if i<5 else f"v[{vAC+4*c_}:{vAC+4*c_+3}]"
        a(f"v_mfma_f32_16x16x32_bf16 v[{vAC+4*c_}:{vAC+4*c_+3}], v[{16+4*(i//5)}:{19+4*(i//5)}], v[{vW+4*i}:{vW+4*i+3}], {c}")
    a(f"v_lshrrev_b32 v2, 5, v{vL}",f"v_mul_u32_u24 v2, 2560, v2",f"v_and_b32 v3, 15, v{vL}",f"v_lshl_add_u32 v2, v3, 5, v2",f"v_and_b32 v3, 16, v{vL}",f"v_add_u32 v2, v2, v3")
    a(f"s_mul_i32 s{sT0}, s{sWAVE}, 5120",f"v_add_u32 v2, s{sT0}, v2")
    for c_ in range(5): a(f"ds_write_b128 v2, v[{vAC+4*c_}:{vAC+4*c_+3}] offset:{4096+512*c_}")
    a("s_waitcnt lgkmcnt(0)","s_barrier")
    a("v_lshlrev_b32 v2, 2, v0")
    for k in range(5):
        for v in range(4): a(f"ds_read_b32 v{8+4*k+v}, v2 offset:{4096+1024*k+5120*v}")
        a("s_waitcnt lgkmcnt(0)")
    a(f"s_mul_i32 s{sT0}, s{sU}, 5120",f"s_add_u32 s{sT0}, s{sT0}, {WS_Z}")
    for k in range(5):
        a(f"v_add_f32 v{8+4*k}, v{8+4*k}, v{9+4*k}",f"v_add_f32 v{10+4*k}, v{10+4*k}, v{11+4*k}",f"v_add_f32 v{8+4*k}, v{8+4*k}, v{10+4*k}")
        a(f"buffer_store_dword v{8+4*k}, v2, {srd(sWS)}, s{sT0} offen sc1",f"s_add_u32 s{sT0}, s{sT0}, 1024")
    a("s_waitcnt vmcnt(0)","s_barrier")
    a("v_mov_b32 v8, 1","v_mov_b32 v9, 0","v_cmp_eq_u32 vcc, 0, v0","s_and_saveexec_b64 s[52:53], vcc","s_cbranch_execz L_end")
    a(f"buffer_atomic_add v8, v9, {srd(sDBG)}, 0 offen sc1")
    a("L_end:","s_endpgm")
    a('.section .rodata,"a"',".p2align 6",f".amdhsa_kernel {KN}")
    a("  .amdhsa_next_free_vgpr 200","  .amdhsa_next_free_sgpr 96","  .amdhsa_accum_offset 200","  .amdhsa_group_segment_fixed_size 0","  .amdhsa_kernarg_size 88")
    a("  .amdhsa_user_sgpr_count 2","  .amdhsa_user_sgpr_kernarg_segment_ptr 1","  .amdhsa_system_sgpr_workgroup_id_x 1","  .amdhsa_float_denorm_mode_32 3",".end_amdhsa_kernel")
    return a.finalize()
if __name__=="__main__":
    kw=json.loads(sys.argv[1]) if len(sys.argv)>1 else {}
    sys.stdout.write(gen(**kw))
```

```python
import sys, json
from asmlib import Asm
KN = "parallel_sum__mha_block_cached__dense_activation_relu__decode_kernel"
HDR = open("parallel_sum__mha_block_cached__dense_activation_relu__decode.s.ref").read().split("; Override launch")[0]

LOG2E = "0x3fb8aa3b"
SCALE = "0x3d93cd3a"
INV640 = "0x3acccccd"
EPS = "0x3727c5ac"
WS_O = 0
WS_Y = 262144
WS_Z = WS_Y+163840
WS_STAMP = 1<<20
WS_SIZE = 4<<20
L_QP=0
L_QB=6144
L_OP=8192
L_ML=15360
L_OD=15616
L_YP=17408
LDS_SIZE=24576

class VM:
    def __init__(s,a): s.a=a; s.q=[]
    def op(s,text,tag): s.a(text); s.q.append(tag)
    def wait(s,tag):
        idx=max(i for i,t in enumerate(s.q) if t==tag)
        n=len(s.q)-1-idx
        s.a(f"s_waitcnt vmcnt({min(n,63)})"); s.q=s.q[idx+1:]

def gen(W=4, kvflags="nt", wqflags="nt", woflags="nt", mlpflags="nt", stamps=0, mlpprio=3, sleep=0):
    G=8; S=8; NIT=8
    a=Asm()
    a(HDR.rstrip("\n"))
    a(f"; @launch grid=(280,1,1) block=(256,1,1) lds={LDS_SIZE}")
    a('.amdgcn_target "amdgcn-amd-amdhsa--gfx950"',".text",f".globl {KN}",".p2align 8",f".type {KN},@function",f"{KN}:")
    sX,sK,sV,sWA,sWB,sWS,sDBG,sOUT=4,8,12,16,20,24,28,32
    srd=lambda r: f"s[{r}:{r+3}]"
    sWAVE,sH,sB,sS,sKo,sVo,sIT,sT0,sT1,sT2=3,36,37,38,39,40,41,42,43,44
    sSPIN=45
    nstamp=[0]
    def stamp():
        if stamps:
            k=nstamp[0]; nstamp[0]+=1
            a(f"s_memrealtime s[{64+2*k}:{65+2*k}]")
    def allsum(v,t):
        a(f"v_add_f32_dpp v{v}, v{v}, v{v} quad_perm:[1,0,3,2] row_mask:0xf bank_mask:0xf")
        a(f"v_add_f32_dpp v{v}, v{v}, v{v} quad_perm:[2,3,0,1] row_mask:0xf bank_mask:0xf")
        a(f"v_add_f32_dpp v{v}, v{v}, v{v} row_half_mirror row_mask:0xf bank_mask:0xf")
        grpred(v,t,"add")
    def grpred(v,t,op):
        a(f"v_{op}_f32_dpp v{v}, v{v}, v{v} row_ror:8 row_mask:0xf bank_mask:0xf")
        a(f"v_mov_b32 v{t}, v{v}")
        a(f"v_permlane16_swap_b32 v{t}, v{v}")
        a(f"v_{op}_f32 v{v}, v{t}, v{v}")
        a(f"v_mov_b32 v{t}, v{v}")
        a(f"v_permlane32_swap_b32 v{t}, v{v}")
        a(f"v_{op}_f32 v{v}, v{t}, v{v}")
    def rnd(v):
        a(f"v_cvt_pk_bf16_f32 v{v}, v{v}, v{v}")
        a(f"v_and_b32 v{v}, 0xffff0000, v{v}")
    def layernorm(st, own, XD, t):
        for k in range(5):
            a(f"v_lshlrev_b32 v{t+2*k}, 16, v{st+k}")
            a(f"v_and_b32 v{t+2*k+1}, 0xffff0000, v{st+k}")
        s_=t+10; u=t+11; mean=t+12; rd=t+13
        a(f"v_add_f32 v{s_}, v{t}, v{t+1}")
        for k in range(2,10): a(f"v_add_f32 v{s_}, v{s_}, v{t+k}")
        allsum(s_,u)
        a(f"v_mul_f32 v{mean}, {INV640}, v{s_}")
        for k in range(10): a(f"v_sub_f32 v{t+k}, v{t+k}, v{mean}")
        a(f"v_mul_f32 v{s_}, v{t}, v{t}")
        for k in range(1,10): a(f"v_fmac_f32 v{s_}, v{t+k}, v{t+k}")
        allsum(s_,u)
        a(f"v_mul_f32 v{s_}, {INV640}, v{s_}")
        rnd(s_); a(f"v_add_f32 v{s_}, {EPS}, v{s_}"); rnd(s_)
        a(f"v_sqrt_f32 v{s_}, v{s_}"); rnd(s_)
        a(f"v_rcp_f32 v{rd}, v{s_}")
        rnd(mean)
        for k in range(10):
            a(f"v_lshlrev_b32 v{t}, 16, v{own+k}")
            a(f"v_and_b32 v{t+1}, 0xffff0000, v{own+k}")
            a(f"v_sub_f32 v{t}, v{t}, v{mean}")
            a(f"v_sub_f32 v{t+1}, v{t+1}, v{mean}")
            a(f"v_cvt_pk_bf16_f32 v{t+1}, v{t}, v{t+1}")
            a(f"v_lshlrev_b32 v{t}, 16, v{t+1}")
            a(f"v_and_b32 v{t+1}, 0xffff0000, v{t+1}")
            a(f"v_mul_f32 v{t}, v{t}, v{rd}")
            a(f"v_mul_f32 v{t+1}, v{t+1}, v{rd}")
            a(f"v_cvt_pk_bf16_f32 v{XD+2*k}, v{t}, v{t}")
            a(f"v_cvt_pk_bf16_f32 v{XD+2*k+1}, v{t+1}, v{t+1}")
    a("s_cmp_ge_u32 s2, 280","s_cbranch_scc1 L_end")
    stamp()
    a(f"s_load_dwordx2 s[{sX}:{sX+1}], s[0:1], 0")
    a(f"s_load_dwordx2 s[{sWS}:{sWS+1}], s[0:1], 80")
    a(f"s_load_dwordx2 s[{sDBG}:{sDBG+1}], s[0:1], 72")
    a(f"s_load_dwordx2 s[{sOUT}:{sOUT+1}], s[0:1], 64")
    a(f"s_load_dwordx2 s[{sK}:{sK+1}], s[0:1], 8")
    a(f"s_load_dwordx2 s[{sV}:{sV+1}], s[0:1], 16")
    for r,n in ((sX,2560),(sK,201326592),(sV,201326592),(sWS,WS_SIZE),(sDBG,256),(sOUT,2560)):
        a(f"s_mov_b32 s{r+2}, {n}",f"s_mov_b32 s{r+3}, 0x20000")
    vL,vKo,vM=1,2,4
    a("v_lshrrev_b32 v3, 6, v0",f"v_and_b32 v{vL}, 63, v0",f"v_readfirstlane_b32 s{sWAVE}, v3")
    a(f"v_and_b32 v3, 1, v{vL}","v_cmp_eq_u32 vcc, 1, v3","v_mov_b32 v8, 0xffff","v_mov_b32 v9, 0xffff0000","v_cndmask_b32 v8, v8, v9, vcc")
    a(f"v_bfe_u32 v3, v{vL}, 1, 2")
    for r in range(4):
        a(f"v_cmp_eq_u32 vcc, {r}, v3",f"v_cndmask_b32 v{vM+r}, 0, v8, vcc")
    a("s_cmp_ge_u32 s2, 256","s_cbranch_scc1 L_mlp")
    a(f"s_load_dwordx2 s[{sWA}:{sWA+1}], s[0:1], 24")
    a(f"s_load_dwordx2 s[{sWB}:{sWB+1}], s[0:1], 32")
    for r in (sWA,sWB): a(f"s_mov_b32 s{r+2}, 7864320",f"s_mov_b32 s{r+3}, 0x20000")
    vQ=8; vSC=20; vXD=8; vACC=28; vMX=40; vLS=41; vT=42; vA=48; vWO=56; vRING=104
    a(f"s_and_b32 s{sT0}, s2, 7",f"s_lshr_b32 s{sT1}, s2, 3",f"s_lshr_b32 s{sH}, s{sT1}, 3",f"s_lshl_b32 s{sT0}, s{sT0}, 2",f"s_add_u32 s{sH}, s{sH}, s{sT0}")
    a(f"s_and_b32 s{sS}, s{sT1}, 7",f"s_lshr_b32 s{sB}, s{sS}, 2")
    a(f"s_lshl_b32 s{sT0}, s{sB}, 5",f"s_add_u32 s{sT0}, s{sT0}, s{sH}",f"s_lshl_b32 s{sT0}, s{sT0}, 2",f"s_and_b32 s{sT1}, s{sS}, 3",f"s_add_u32 s{sT0}, s{sT0}, s{sT1}")
    a(f"s_lshl_b32 s{sT0}, s{sT0}, 2",f"s_add_u32 s{sT0}, s{sT0}, s{sWAVE}",f"s_mul_i32 s{sKo}, s{sT0}, 196608",f"s_mov_b32 s{sVo}, s{sKo}")
    vG8=42; vE16=43; vWQo=44; vWOo=45; vXo=46; vXs=47
    a(f"v_lshrrev_b32 v{vG8}, 3, v{vL}",f"v_and_b32 v{vE16}, 7, v{vL}",f"v_lshlrev_b32 v{vE16}, 4, v{vE16}")
    a(f"v_mov_b32 v3, 384",f"v_mad_u32_u24 v{vKo}, v{vG8}, v3, v{vE16}")
    a(f"v_mov_b32 v3, {20*12288}",f"v_mad_u32_u24 v{vWQo}, v{vG8}, v3, v{vE16}")
    a(f"v_mul_u32_u24 v{vXo}, 40, v{vG8}",f"v_lshlrev_b32 v{vXs}, 2, v{vL}")
    a(f"v_lshrrev_b32 v3, 4, v{vL}",f"v_mul_u32_u24 v{vWOo}, {12*1280}, v3",f"v_and_b32 v3, 15, v{vL}",f"v_lshl_add_u32 v{vWOo}, v3, 4, v{vWOo}")
    a(f"v_cmp_gt_u32 vcc, 10, v3",f"v_mov_b32 v3, 0x40000000",f"v_cndmask_b32 v{vWOo}, v3, v{vWOo}, vcc")
    sXo,sXw,sWQo,sWOo,sCl=46,47,48,49,50
    a(f"s_mul_i32 s{sXo}, s{sB}, 1280",f"s_mul_i32 s{sXw}, s{sWAVE}, 320",f"s_add_u32 s{sXw}, s{sXw}, s{sXo}")
    a(f"s_mul_i32 s{sWQo}, s{sWAVE}, {160*12288}",f"s_mul_i32 s{sT0}, s{sH}, 384",f"s_add_u32 s{sWQo}, s{sWQo}, s{sT0}")
    a(f"s_lshl_b32 s{sT0}, s{sH}, 2",f"s_add_u32 s{sT0}, s{sT0}, s{sWAVE}",f"s_mul_i32 s{sWOo}, s{sT0}, {48*1280}",f"s_mul_i32 s{sT0}, s{sS}, 160",f"s_add_u32 s{sWOo}, s{sWOo}, s{sT0}")
    a("s_waitcnt lgkmcnt(0)")
    stamp()
    vm=VM(a)
    vST=56; vOWN=64; vLT=76
    for k in range(5): vm.op(f"buffer_load_dword v{vST+k}, v{vXs}, {srd(sX)}, s{sXo} offen offset:{256*k}","x")
    vm.op(f"buffer_load_dwordx4 v[{vOWN}:{vOWN+3}], v{vXo}, {srd(sX)}, s{sXw} offen","x")
    vm.op(f"buffer_load_dwordx4 v[{vOWN+4}:{vOWN+7}], v{vXo}, {srd(sX)}, s{sXw} offen offset:16","x")
    vm.op(f"buffer_load_dwordx2 v[{vOWN+8}:{vOWN+9}], v{vXo}, {srd(sX)}, s{sXw} offen offset:32","x")
    slot=lambda n: vRING+12*(n%S)
    def ld_wq(n):
        r=slot(n)
        for t in range(3): vm.op(f"buffer_load_dwordx4 v[{r+4*t}:{r+4*t+3}], v{vWQo}, {srd(sWA)}, s{sWQo} offen offset:{128*t} {wqflags}",n)
        a(f"s_add_u32 s{sWQo}, s{sWQo}, 12288")
    def ld_kv(n,isK,track=True):
        r=slot(n); sr=sK if isK else sV; so=sKo if isK else sVo
        for t in range(3):
            txt=f"buffer_load_dwordx4 v[{r+4*t}:{r+4*t+3}], v{vKo}, {srd(sr)}, s{so} offen offset:{128*t} {kvflags}"
            if track: vm.op(txt,n)
            else: a(txt)
        a(f"s_add_u32 s{so}, s{so}, 3072")
    for n in range(-20,-20+S): ld_wq(n)
    a(f"s_lshl_b32 s{sT0}, s{sH}, 3",f"s_add_u32 s{sT0}, s{sT0}, s{sS}",f"s_lshl_b32 s{sCl}, s{sT0}, 10")
    a("v_mov_b32 v48, -1","v_mov_b32 v49, -1","v_mov_b32 v50, -1","v_mov_b32 v51, -1","v_lshlrev_b32 v52, 2, v0")
    vm.op(f"buffer_store_dword v48, v52, {srd(sWS)}, s{sCl} offen sc1","clr")
    vYo=3
    a(f"v_cmp_le_u32 vcc, 20, v0",f"v_mov_b32 v53, {2560-320}",f"v_cndmask_b32 v53, 0, v53, vcc",f"v_lshl_add_u32 v{vYo}, v0, 4, v53")
    a(f"v_cmp_gt_u32 vcc, 40, v0",f"v_mov_b32 v53, 0x40000000",f"v_cndmask_b32 v{vYo}, v53, v{vYo}, vcc")
    sYo=51
    a(f"s_mul_i32 s{sYo}, s{sH}, 5120",f"s_mul_i32 s{sT0}, s{sS}, 320",f"s_add_u32 s{sYo}, s{sYo}, s{sT0}",f"s_add_u32 s{sYo}, s{sYo}, {WS_Y}")
    vm.op(f"buffer_store_dwordx4 v[48:51], v{vYo}, {srd(sWS)}, s{sYo} offen sc1","clr")
    vm.wait("x")
    layernorm(vST,vOWN,vXD,vLT)
    for u in range(12):
        vm.op(f"buffer_load_dwordx4 v[{vWO+4*u}:{vWO+4*u+3}], v{vWOo}, {srd(sWB)}, s{sWOo} offen offset:{1280*(u%3)} {woflags}","wo")
        if u%3==2: a(f"s_add_u32 s{sWOo}, s{sWOo}, 3840")
    stamp()
    def diag(A,P):
        for r in range(4): a(f"v_and_b32 v{A+r}, v{P}, v{vM+r}")
    for n in range(-20,0):
        i=n+20; A=vA+4*(i&1); r=slot(n)
        diag(A,vXD+i)
        vm.wait(n)
        for t in range(3):
            c = "0" if i==0 else f"v[{vACC+4*t}:{vACC+4*t+3}]"
            a(f"v_mfma_f32_16x16x32_bf16 v[{vACC+4*t}:{vACC+4*t+3}], v[{A}:{A+3}], v[{r+4*t}:{r+4*t+3}], {c}")
        if n+S<0: ld_wq(n+S)
        elif n+S<W: ld_kv(n+S,True)
    stamp()
    vPo=42
    a(f"v_lshrrev_b32 v43, 5, v{vL}",f"v_mul_u32_u24 v{vPo}, 768, v43",f"v_and_b32 v43, 7, v{vL}",f"v_lshl_add_u32 v{vPo}, v43, 5, v{vPo}")
    a(f"v_and_b32 v43, 16, v{vL}",f"v_add_u32 v{vPo}, v{vPo}, v43",f"s_mul_i32 s{sT0}, s{sWAVE}, 1536",f"v_add_u32 v{vPo}, s{sT0}, v{vPo}")
    a("s_mov_b32 exec_lo, 0x00ff00ff","s_mov_b32 exec_hi, 0xff00ff00")
    for t in range(3): a(f"ds_write_b128 v{vPo}, v[{vACC+4*t}:{vACC+4*t+3}] offset:{L_QP+256*t}")
    a("s_mov_b64 exec, -1","s_waitcnt lgkmcnt(0)","s_barrier")
    a("v_mov_b32 v43, 1","v_mov_b32 v44, 0","v_cmp_eq_u32 vcc, 0, v0","s_and_saveexec_b64 s[52:53], vcc","s_cbranch_execz L_nosig")
    a(f"buffer_atomic_add v43, v44, {srd(sDBG)}, 0 offen sc1")
    a("L_nosig:","s_mov_b64 exec, -1")
    a(f"v_lshlrev_b32 v43, 4, v{vL}")
    tq=vRING+12*((W)%S) if W<S else None
    for p in range(8): a(f"ds_read_b128 v[{8+4*p}:{11+4*p}], v43 offset:{L_QP+768*p}")
    a("s_waitcnt lgkmcnt(0)")
    for st in (16,8,4):
        for r in range(st): a(f"v_add_f32 v{8+r}, v{8+r}, v{8+st+r}")
    a("v_cvt_pk_bf16_f32 v8, v8, v9","v_cvt_pk_bf16_f32 v9, v10, v11")
    a(f"s_lshl_b32 s{sT0}, s{sWAVE}, 9",f"v_lshl_add_u32 v43, v{vL}, 3, s{sT0}")
    a(f"ds_write_b64 v43, v[8:9] offset:{L_QB}")
    a(f"v_and_b32 v43, 7, v{vL}",f"v_lshl_add_u32 v43, v43, 4, s{sT0}","s_waitcnt lgkmcnt(0)")
    for t in range(3): a(f"ds_read_b128 v[{vQ+4*t}:{vQ+4*t+3}], v43 offset:{L_QB+128*t}")
    for r in range(12): a(f"v_mov_b32 v{vACC+r}, 0")
    a(f"v_mov_b32 v{vMX}, 0xff7fffff",f"v_mov_b32 v{vLS}, 0",f"s_mov_b32 s{sIT}, {NIT}")
    a("s_waitcnt lgkmcnt(0)")
    a("L_loop:")
    for n in range(2*G):
        r=slot(n)
        early = W<S
        def issue():
            m=n+W
            if m==2*G:
                a(f"s_cmp_eq_u32 s{sIT}, 1",f"s_cselect_b32 s{sK+2}, 0, s{sK+2}")
            ld_kv(m, (m<G or m>=2*G), track=False)
        if n>=G:
            g=n-G; A=vA+4*(g&1)
            a(f"v_sub_f32 v{vT+1}, v{vSC+g}, v{vMX}",f"v_mul_f32 v{vT+1}, {LOG2E}, v{vT+1}",f"v_exp_f32 v{vT+1}, v{vT+1}")
            a(f"v_add_f32 v{vLS}, v{vLS}, v{vT+1}",f"v_cvt_pk_bf16_f32 v{vT+1}, v{vT+1}, v{vT+1}")
            diag(A,vT+1)
        else:
            a(f"v_mov_b32 v{vSC+n}, 0")
        a(f"s_waitcnt vmcnt({3*(W-1)})")
        if early: issue()
        if n<G:
            sc=vSC+n
            for i in range(12): a(f"v_dot2c_f32_bf16 v{sc}, v{r+i}, v{vQ+i}")
            if not early: issue()
            a(f"v_add_f32_dpp v{sc}, v{sc}, v{sc} quad_perm:[1,0,3,2] row_mask:0xf bank_mask:0xf")
            a(f"v_add_f32_dpp v{sc}, v{sc}, v{sc} quad_perm:[2,3,0,1] row_mask:0xf bank_mask:0xf")
            a(f"v_add_f32_dpp v{sc}, v{sc}, v{sc} row_half_mirror row_mask:0xf bank_mask:0xf")
            if n&1:
                x,y=sc-1,sc
                a(f"v_cvt_pk_bf16_f32 v{y}, v{x}, v{y}",f"v_lshlrev_b32 v{x}, 16, v{y}",f"v_and_b32 v{y}, 0xffff0000, v{y}")
                a(f"v_mul_f32 v{x}, {SCALE}, v{x}",f"v_mul_f32 v{y}, {SCALE}, v{y}")
                a(f"v_cvt_pk_bf16_f32 v{y}, v{x}, v{y}",f"v_lshlrev_b32 v{x}, 16, v{y}",f"v_and_b32 v{y}, 0xffff0000, v{y}")
            if n==G-1:
                t0,t1=vT+1,vT+2
                a(f"v_max3_f32 v{t0}, v{vSC}, v{vSC+1}, v{vMX}")
                for k in range(2,G,2): a(f"v_max3_f32 v{t0}, v{vSC+k}, v{vSC+k+1}, v{t0}")
                grpred(t0,t1,"max")
                a(f"v_sub_f32 v{t1}, v{vMX}, v{t0}",f"v_mov_b32 v{vMX}, v{t0}",f"v_mul_f32 v{t1}, {LOG2E}, v{t1}",f"v_exp_f32 v{t1}, v{t1}")
                a(f"v_mul_f32 v{vLS}, v{vLS}, v{t1}")
                for k in range(12): a(f"v_mul_f32 v{vACC+k}, v{vACC+k}, v{t1}")
        else:
            for t in range(3):
                a(f"v_mfma_f32_16x16x32_bf16 v[{vACC+4*t}:{vACC+4*t+3}], v[{A}:{A+3}], v[{r+4*t}:{r+4*t+3}], v[{vACC+4*t}:{vACC+4*t+3}]")
            if not early: issue()
    a(f"s_sub_u32 s{sIT}, s{sIT}, 1",f"s_cmp_lg_u32 s{sIT}, 0","s_cbranch_scc1 L_loop")
    stamp()
    vCT=44
    a("v_mov_b32 v45, 0",f"buffer_load_dword v{vCT}, v45, {srd(sDBG)}, 0 offen sc1")
    grpred(vLS,43,"add")
    a("s_mov_b32 exec_lo, 0x00ff00ff","s_mov_b32 exec_hi, 0xff00ff00")
    for t in range(3): a(f"ds_write_b128 v{vPo}, v[{vACC+4*t}:{vACC+4*t+3}] offset:{L_OP+256*t}")
    a(f"s_lshl_b32 s{sT0}, s{sWAVE}, 3",f"v_mov_b32 v43, s{sT0}",f"ds_write_b64 v43, v[{vMX}:{vLS}] offset:{L_ML}")
    a("s_mov_b64 exec, -1","s_waitcnt lgkmcnt(0)","s_barrier")
    a(f"s_cmp_eq_u32 s{sWAVE}, 0","s_cbranch_scc0 L_pub_done")
    R=vRING
    a("s_waitcnt vmcnt(1)")
    a(f"v_lshlrev_b32 v43, 4, v{vL}")
    a(f"ds_read_b128 v[{R+32}:{R+35}], v45 offset:{L_ML}",f"ds_read_b128 v[{R+36}:{R+39}], v45 offset:{L_ML+16}")
    for p in range(8): a(f"ds_read_b128 v[{R+4*p}:{R+4*p+3}], v43 offset:{L_OP+768*p}")
    a("s_waitcnt lgkmcnt(8)")
    M=R+40
    a(f"v_max3_f32 v{M}, v{R+32}, v{R+34}, v{R+36}",f"v_max_f32 v{M}, v{M}, v{R+38}")
    for v in range(4): a(f"v_sub_f32 v{R+32+2*v}, v{R+32+2*v}, v{M}")
    for v in range(4): a(f"v_mul_f32 v{R+32+2*v}, {LOG2E}, v{R+32+2*v}")
    for v in range(4): a(f"v_exp_f32 v{R+32+2*v}, v{R+32+2*v}")
    a(f"v_mul_f32 v{M+1}, v{R+32}, v{R+33}")
    for v in range(1,4): a(f"v_fmac_f32 v{M+1}, v{R+32+2*v}, v{R+33+2*v}")
    a("s_waitcnt lgkmcnt(0)")
    for v in range(4):
        for r in range(4): a(f"v_add_f32 v{R+8*v+r}, v{R+8*v+r}, v{R+8*v+4+r}")
    for r in range(4): a(f"v_mul_f32 v{R+r}, v{R+r}, v{R+32}")
    for v in range(1,4):
        for r in range(4): a(f"v_fmac_f32 v{R+r}, v{R+8*v+r}, v{R+32+2*v}")
    a(f"v_cmp_eq_u32 vcc, 48, v{vL}",f"v_cndmask_b32 v{R}, v{R}, v{M}, vcc",f"v_cndmask_b32 v{R+1}, v{R+1}, v{M+1}, vcc")
    for r in range(4): a(f"v_min_u32 v{R+r}, -2, v{R+r}")
    a("s_mov_b32 exec_lo, -1","s_mov_b32 exec_hi, 0x1ffff")
    a(f"buffer_store_dwordx4 v[{R}:{R+3}], v43, {srd(sWS)}, s{sCl} offen sc1")
    a("s_mov_b64 exec, -1")
    a("L_pub_done:")
    stamp()
    a(f"s_mov_b32 s{sSPIN}, 0x100000")
    a("L_ctr:","s_waitcnt vmcnt(0)",f"v_readfirstlane_b32 s{sT0}, v{vCT}",f"s_cmp_ge_u32 s{sT0}, 280","s_cbranch_scc1 L_ctr_ok")
    a(f"s_sub_u32 s{sSPIN}, s{sSPIN}, 1","s_cbranch_scc1 L_end")
    a(f"buffer_load_dword v{vCT}, v45, {srd(sDBG)}, 0 offen sc1","s_branch L_ctr")
    a("L_ctr_ok:")
    a(f"v_cmp_le_u32 vcc, 12, v{vL}",f"v_mov_b32 v43, 4096",f"v_cndmask_b32 v46, 0, v43, vcc")
    a(f"v_mov_b32 v43, {4096-192}",f"v_cndmask_b32 v43, 0, v43, vcc",f"v_lshl_add_u32 v47, v{vL}, 4, v43")
    a(f"s_mul_i32 s{sT0}, s{sWAVE}, 192",f"v_add_u32 v47, s{sT0}, v47",f"s_lshl_b32 s{sT1}, s{sH}, 13")
    a("s_mov_b32 exec_lo, 0xffffff","s_mov_b32 exec_hi, 0")
    a("L_poll1:")
    for q in range(4):
        a(f"buffer_load_dwordx4 v[{R+4*q}:{R+4*q+3}], v47, {srd(sWS)}, s{sT1} offen offset:{1024*q} sc1")
        a(f"buffer_load_dwordx2 v[{R+16+2*q}:{R+17+2*q}], v46, {srd(sWS)}, s{sT1} offen offset:{1024*q+768} sc1")
    a("s_waitcnt vmcnt(0)")
    a(f"v_max3_u32 v43, v{R}, v{R+1}, v{R+2}")
    for k in range(3,23,2): a(f"v_max3_u32 v43, v{R+k}, v{R+k+1}, v43")
    a(f"v_max_u32 v43, v{R+23}, v43","v_cmp_eq_u32 vcc, -1, v43","s_cbranch_vccz L_poll1_ok")
    a(f"s_sub_u32 s{sSPIN}, s{sSPIN}, 1",*([f"s_sleep {sleep}"] if sleep else []),"s_cbranch_scc0 L_poll1","s_endpgm")
    a("L_poll1_ok:")
    stamp()
    M=R+24
    a(f"v_max3_f32 v{M}, v{R+16}, v{R+18}, v{R+20}",f"v_max_f32 v{M}, v{M}, v{R+22}")
    for v in range(4): a(f"v_sub_f32 v{R+16+2*v}, v{R+16+2*v}, v{M}")
    for v in range(4): a(f"v_mul_f32 v{R+16+2*v}, {LOG2E}, v{R+16+2*v}")
    for v in range(4): a(f"v_exp_f32 v{R+16+2*v}, v{R+16+2*v}")
    a(f"v_mul_f32 v{M+1}, v{R+16}, v{R+17}")
    for v in range(1,4): a(f"v_fmac_f32 v{M+1}, v{R+16+2*v}, v{R+17+2*v}")
    a(f"v_rcp_f32 v{M+1}, v{M+1}")
    for r in range(4): a(f"v_mul_f32 v{R+r}, v{R+r}, v{R+16}")
    for v in range(1,4):
        for r in range(4): a(f"v_fmac_f32 v{R+r}, v{R+4*v+r}, v{R+16+2*v}")
    for r in range(4): a(f"v_mul_f32 v{R+r}, v{R+r}, v{M+1}")
    for r in range(4): a(f"v_cvt_pk_bf16_f32 v{R+r}, v{R+r}, v{R+r}")
    a(f"s_mul_i32 s{sT0}, s{sWAVE}, 384",f"v_lshl_add_u32 v43, v{vL}, 4, s{sT0}",f"ds_write_b128 v43, v[{R}:{R+3}] offset:{L_OD}")
    a("s_mov_b64 exec, -1")
    a(f"v_bfe_u32 v43, v{vL}, 3, 1",f"v_mul_u32_u24 v43, 192, v43",f"v_lshrrev_b32 v46, 4, v{vL}",f"v_mad_u32_u24 v43, v46, 48, v43",f"v_add_u32 v43, s{sT0}, v43")
    a("s_waitcnt lgkmcnt(0)")
    for k in range(3): a(f"ds_read_b128 v[{R+4*k}:{R+4*k+3}], v43 offset:{L_OD+16*k}")
    a("s_waitcnt lgkmcnt(0)")
    for u in range(12):
        A=R+16+4*u
        diag(A,R+u)
    for u in range(12):
        A=R+16+4*u
        c="0" if u==0 else f"v[{vACC}:{vACC+3}]"
        a(f"v_mfma_f32_16x16x32_bf16 v[{vACC}:{vACC+3}], v[{A}:{A+3}], v[{vWO+4*u}:{vWO+4*u+3}], {c}")
    a(f"v_lshrrev_b32 v43, 5, v{vL}",f"v_lshlrev_b32 v43, 9, v43",f"v_and_b32 v46, 15, v{vL}",f"v_lshl_add_u32 v43, v46, 5, v43",f"v_and_b32 v46, 16, v{vL}",f"v_add_u32 v43, v43, v46")
    a(f"s_lshl_b32 s{sT0}, s{sWAVE}, 10",f"v_add_u32 v43, s{sT0}, v43",f"ds_write_b128 v43, v[{vACC}:{vACC+3}] offset:{L_YP}")
    a("s_waitcnt lgkmcnt(0)","s_barrier")
    a(f"s_cmp_eq_u32 s{sWAVE}, 0","s_cbranch_scc0 L_fin")
    a(f"v_cmp_le_u32 vcc, 20, v{vL}",f"v_mov_b32 v43, {512-320}",f"v_cndmask_b32 v43, 0, v43, vcc",f"v_lshl_add_u32 v43, v{vL}, 4, v43")
    for v in range(4): a(f"ds_read_b128 v[{R+4*v}:{R+4*v+3}], v43 offset:{L_YP+1024*v}")
    a("s_waitcnt lgkmcnt(0)")
    for r in range(8): a(f"v_add_f32 v{R+r}, v{R+r}, v{R+8+r}")
    for r in range(4): a(f"v_add_f32 v{R+r}, v{R+r}, v{R+4+r}")
    for r in range(4): a(f"v_min_u32 v{R+r}, -2, v{R+r}")
    a(f"buffer_store_dwordx4 v[{R}:{R+3}], v{vYo}, {srd(sWS)}, s{sYo} offen sc1")
    stamp()
    a("s_cmp_lt_u32 s2, 40","s_cbranch_scc0 L_fin")
    a(f"v_lshrrev_b32 v43, 3, v{vL}",f"v_mul_u32_u24 v43, 5120, v43",f"v_and_b32 v46, 7, v{vL}",f"v_lshl_add_u32 v43, v46, 4, v43",f"v_lshlrev_b32 v46, 3, v46")
    a(f"s_lshl_b32 s{sT0}, s2, 7",f"s_add_u32 s{sT1}, s{sT0}, {WS_Z}",f"s_add_u32 s{sT0}, s{sT0}, {WS_Y}",f"s_lshl_b32 s{sT2}, s2, 6")
    Z=R+16; X=R+28
    for k in range(3):
        a(f"buffer_load_dwordx4 v[{Z+4*k}:{Z+4*k+3}], v43, {srd(sWS)}, s{sT1} offen sc1",f"s_add_u32 s{sT1}, s{sT1}, 40960")
    a(f"buffer_load_dwordx2 v[{X}:{X+1}], v46, {srd(sX)}, s{sT2} offen")
    a("L_poll2:",f"s_mov_b32 s{sT1}, s{sT0}")
    for k in range(4):
        a(f"buffer_load_dwordx4 v[{R+4*k}:{R+4*k+3}], v43, {srd(sWS)}, s{sT1} offen sc1",f"s_add_u32 s{sT1}, s{sT1}, 40960")
    a("s_waitcnt vmcnt(0)")
    a(f"v_max3_u32 v47, v{R}, v{R+1}, v{R+2}")
    for k in range(3,15,2): a(f"v_max3_u32 v47, v{R+k}, v{R+k+1}, v47")
    a(f"v_max_u32 v47, v{R+15}, v47","v_cmp_eq_u32 vcc, -1, v47","s_cbranch_vccz L_poll2_ok")
    a(f"s_sub_u32 s{sSPIN}, s{sSPIN}, 1","s_cbranch_scc0 L_poll2","s_endpgm")
    a("L_poll2_ok:")
    stamp()
    for r in range(8): a(f"v_add_f32 v{R+r}, v{R+r}, v{R+8+r}")
    for r in range(4): a(f"v_add_f32 v{R+r}, v{R+r}, v{R+4+r}")
    for r in range(4): a(f"v_add_f32 v{Z+r}, v{Z+r}, v{Z+4+r}")
    for r in range(4): a(f"v_add_f32 v{Z+r}, v{Z+r}, v{Z+8+r}")
    regs=[R+r for r in range(4)]+[Z+r for r in range(4)]
    T=R+32
    for i,v in enumerate(regs): a(f"v_add_f32_dpp v{v}, v{v}, v{v} row_ror:8 row_mask:0xf bank_mask:0xf")
    for sw in ("16","32"):
        for i,v in enumerate(regs): a(f"v_mov_b32 v{T+i}, v{v}")
        for i,v in enumerate(regs): a(f"v_permlane{sw}_swap_b32 v{T+i}, v{v}")
        for i,v in enumerate(regs): a(f"v_add_f32 v{v}, v{T+i}, v{v}")
    for v in regs: rnd(v)
    a(f"v_lshlrev_b32 v{T}, 16, v{X}",f"v_and_b32 v{T+1}, 0xffff0000, v{X}",f"v_lshlrev_b32 v{T+2}, 16, v{X+1}",f"v_and_b32 v{T+3}, 0xffff0000, v{X+1}")
    for r in range(4): a(f"v_add_f32 v{R+r}, v{T+r}, v{R+r}")
    for r in range(4): rnd(R+r)
    for r in range(4): a(f"v_add_f32 v{R+r}, v{R+r}, v{Z+r}")
    a(f"v_cvt_pk_bf16_f32 v{R}, v{R}, v{R+1}",f"v_cvt_pk_bf16_f32 v{R+1}, v{R+2}, v{R+3}")
    a("s_mov_b64 exec, 0xff")
    a(f"buffer_store_dwordx2 v[{R}:{R+1}], v46, {srd(sOUT)}, s{sT2} offen")
    a("s_mov_b64 exec, -1")
    a("L_fin:")
    if stamps:
        stamp()
        a("s_waitcnt lgkmcnt(0)")
        a(f"s_lshl_b32 s{sT0}, s2, 2",f"s_add_u32 s{sT0}, s{sT0}, s{sWAVE}",f"s_lshl_b32 s{sT0}, s{sT0}, 7",f"s_add_u32 s{sT0}, s{sT0}, {WS_STAMP}")
        a("v_mov_b32 v43, 0","s_mov_b64 exec, 1")
        for k in range(nstamp[0]):
            a(f"v_mov_b32 v44, s{64+2*k}",f"v_mov_b32 v45, s{65+2*k}",f"buffer_store_dwordx2 v[44:45], v43, {srd(sWS)}, s{sT0} offen offset:{8*k}","s_nop 1")
    a("s_endpgm")
    a("L_mlp:")
    if mlpprio: a(f"s_setprio {mlpprio}")
    sU=36
    a(f"s_load_dwordx2 s[{sWA}:{sWA+1}], s[0:1], 48",f"s_load_dwordx2 s[{sWB}:{sWB+1}], s[0:1], 56")
    for r in (sWA,sWB): a(f"s_mov_b32 s{r+2}, 1966080",f"s_mov_b32 s{r+3}, 0x20000")
    a(f"s_sub_u32 s{sU}, s2, 256")
    vXD0=8; vXD1=28; vA=48; vAC=56; vW=96; vTm=76
    o1,o2,oX,oS=176,177,178,179
    a(f"v_lshrrev_b32 v2, 3, v{vL}",f"v_and_b32 v3, 7, v{vL}",f"v_lshlrev_b32 v3, 4, v3")
    a(f"v_mul_u32_u24 v{o1}, {20*3072}, v2",f"v_add_u32 v{o1}, v{o1}, v3",f"v_mul_u32_u24 v{oX}, 40, v2",f"v_lshlrev_b32 v{oS}, 2, v{vL}")
    a(f"v_lshrrev_b32 v2, 4, v{vL}",f"v_mul_u32_u24 v{o2}, {4*1280}, v2",f"v_and_b32 v3, 15, v{vL}",f"v_lshl_add_u32 v{o2}, v3, 4, v{o2}")
    s1,s2_,sxw=37,38,39
    a(f"s_mul_i32 s{s1}, s{sWAVE}, {160*3072}",f"s_lshl_b32 s{sT0}, s{sU}, 7",f"s_add_u32 s{s1}, s{s1}, s{sT0}")
    a(f"s_lshl_b32 s{sT0}, s{sU}, 2",f"s_add_u32 s{sT0}, s{sT0}, s{sWAVE}",f"s_mul_i32 s{s2_}, s{sT0}, {16*1280}")
    a(f"s_mul_i32 s{sxw}, s{sWAVE}, 320")
    a("s_waitcnt lgkmcnt(0)")
    vm=VM(a)
    XS=[180,56]; XO=[186,62]
    for b in range(2):
        for k in range(5): vm.op(f"buffer_load_dword v{XS[b]+k}, v{oS}, {srd(sX)}, 0 offen offset:{1280*b+256*k}","x")
        vm.op(f"buffer_load_dwordx4 v[{XO[b]}:{XO[b]+3}], v{oX}, {srd(sX)}, s{sxw} offen offset:{1280*b}","x")
        vm.op(f"buffer_load_dwordx4 v[{XO[b]+4}:{XO[b]+7}], v{oX}, {srd(sX)}, s{sxw} offen offset:{1280*b+16}","x")
        vm.op(f"buffer_load_dwordx2 v[{XO[b]+8}:{XO[b]+9}], v{oX}, {srd(sX)}, s{sxw} offen offset:{1280*b+32}","x")
    for i in range(20):
        vm.op(f"buffer_load_dwordx4 v[{vW+4*i}:{vW+4*i+3}], v{o1}, {srd(sWA)}, s{s1} offen {mlpflags}",("w1",i))
        a(f"s_add_u32 s{s1}, s{s1}, 3072")
    vm.wait("x")
    layernorm(XS[0],XO[0],vXD0,vTm)
    layernorm(XS[1],XO[1],vXD1,vTm)
    for i in range(20):
        diag(vA,vXD0+i); diag(vA+4,vXD1+i)
        vm.wait(("w1",i))
        for b in range(2):
            c="0" if i==0 else f"v[{vAC+4*b}:{vAC+4*b+3}]"
            a(f"v_mfma_f32_16x16x32_bf16 v[{vAC+4*b}:{vAC+4*b+3}], v[{vA+4*b}:{vA+4*b+3}], v[{vW+4*i}:{vW+4*i+3}], {c}")
        vm.op(f"buffer_load_dwordx4 v[{vW+4*i}:{vW+4*i+3}], v{o2}, {srd(sWB)}, s{s2_} offen offset:{256*(i%5)} {mlpflags}",("w2",i))
        if i%5==4: a(f"s_add_u32 s{s2_}, s{s2_}, 1280")
    a(f"v_lshrrev_b32 v2, 5, v{vL}",f"v_lshlrev_b32 v2, 9, v2",f"v_and_b32 v3, 7, v{vL}",f"v_lshl_add_u32 v2, v3, 5, v2",f"v_and_b32 v3, 16, v{vL}",f"v_add_u32 v2, v2, v3")
    a(f"s_lshl_b32 s{sT0}, s{sWAVE}, 10",f"v_add_u32 v2, s{sT0}, v2")
    a("s_mov_b32 exec_lo, 0x00ff00ff","s_mov_b32 exec_hi, 0xff00ff00")
    for b in range(2): a(f"ds_write_b128 v2, v[{vAC+4*b}:{vAC+4*b+3}] offset:{256*b}")
    a("s_mov_b64 exec, -1","s_waitcnt lgkmcnt(0)","s_barrier")
    a(f"v_bfe_u32 v2, v{vL}, 3, 1",f"v_lshlrev_b32 v2, 8, v2",f"v_and_b32 v3, 48, v{vL}",f"v_add_u32 v2, v2, v3",f"s_lshl_b32 s{sT0}, s{sWAVE}, 6",f"v_add_u32 v2, s{sT0}, v2")
    for p in range(8): a(f"ds_read_b128 v[{8+4*p}:{11+4*p}], v2 offset:{512*p}")
    a("s_waitcnt lgkmcnt(0)")
    for st in (16,8,4):
        for r in range(st): a(f"v_add_f32 v{8+r}, v{8+r}, v{8+st+r}")
    for r in range(4): a(f"v_maximum3_f32 v{8+r}, v{8+r}, 0, 0")
    for r in range(4): a(f"v_cvt_pk_bf16_f32 v{8+r}, v{8+r}, v{8+r}")
    for i in range(4): diag(16+4*i,8+i)
    for i in range(20):
        vm.wait(("w2",i))
        c_=i%5; c="0" if i<5 else f"v[{vAC+4*c_}:{vAC+4*c_+3}]"
        a(f"v_mfma_f32_16x16x32_bf16 v[{vAC+4*c_}:{vAC+4*c_+3}], v[{16+4*(i//5)}:{19+4*(i//5)}], v[{vW+4*i}:{vW+4*i+3}], {c}")
    a(f"v_lshrrev_b32 v2, 5, v{vL}",f"v_mul_u32_u24 v2, 2560, v2",f"v_and_b32 v3, 15, v{vL}",f"v_lshl_add_u32 v2, v3, 5, v2",f"v_and_b32 v3, 16, v{vL}",f"v_add_u32 v2, v2, v3")
    a(f"s_mul_i32 s{sT0}, s{sWAVE}, 5120",f"v_add_u32 v2, s{sT0}, v2")
    for c_ in range(5): a(f"ds_write_b128 v2, v[{vAC+4*c_}:{vAC+4*c_+3}] offset:{4096+512*c_}")
    a("s_waitcnt lgkmcnt(0)","s_barrier")
    a("v_lshlrev_b32 v2, 2, v0")
    for k in range(5):
        for v in range(4): a(f"ds_read_b32 v{8+4*k+v}, v2 offset:{4096+1024*k+5120*v}")
        a("s_waitcnt lgkmcnt(0)")
    a(f"s_mul_i32 s{sT0}, s{sU}, 5120",f"s_add_u32 s{sT0}, s{sT0}, {WS_Z}")
    for k in range(5):
        a(f"v_add_f32 v{8+4*k}, v{8+4*k}, v{9+4*k}",f"v_add_f32 v{10+4*k}, v{10+4*k}, v{11+4*k}",f"v_add_f32 v{8+4*k}, v{8+4*k}, v{10+4*k}")
        a(f"buffer_store_dword v{8+4*k}, v2, {srd(sWS)}, s{sT0} offen sc1",f"s_add_u32 s{sT0}, s{sT0}, 1024")
    a("s_waitcnt vmcnt(0)","s_barrier")
    a("v_mov_b32 v8, 1","v_mov_b32 v9, 0","v_cmp_eq_u32 vcc, 0, v0","s_and_saveexec_b64 s[52:53], vcc","s_cbranch_execz L_end")
    a(f"buffer_atomic_add v8, v9, {srd(sDBG)}, 0 offen sc1")
    if stamps:
        a("s_memrealtime s[66:67]","s_waitcnt lgkmcnt(0)")
        a(f"s_lshl_b32 s{sT0}, s2, 9",f"s_add_u32 s{sT0}, s{sT0}, {WS_STAMP}")
        for k in range(2):
            a(f"v_mov_b32 v44, s{64+2*k}",f"v_mov_b32 v45, s{65+2*k}",f"buffer_store_dwordx2 v[44:45], v9, {srd(sWS)}, s{sT0} offen offset:{8*k}","s_nop 1")
    a("L_end:","s_endpgm")
    a('.section .rodata,"a"',".p2align 6",f".amdhsa_kernel {KN}")
    a("  .amdhsa_next_free_vgpr 200","  .amdhsa_next_free_sgpr 96","  .amdhsa_accum_offset 200","  .amdhsa_group_segment_fixed_size 0","  .amdhsa_kernarg_size 88")
    a("  .amdhsa_user_sgpr_count 2","  .amdhsa_user_sgpr_kernarg_segment_ptr 1","  .amdhsa_system_sgpr_workgroup_id_x 1","  .amdhsa_float_denorm_mode_32 3",".end_amdhsa_kernel")
    return a.finalize()
if __name__=="__main__":
    kw=json.loads(sys.argv[1]) if len(sys.argv)>1 else {}
    sys.stdout.write(gen(**kw))
```

```python
import sys, json
from asmlib import Asm
KN = "parallel_sum__mha_block_cached__dense_activation_relu__decode_kernel"
HDR = open("parallel_sum__mha_block_cached__dense_activation_relu__decode.s.ref").read().split("; Override launch")[0]
LOG2E = "0x3fb8aa3b"; SCALE = "0x3d93cd3a"; INV640 = "0x3acccccd"; EPS = "0x3727c5ac"
WS_O=0; WS_QX=0x80000; WS_Y=0xC0000; WS_Z=0xE8000; WS_E=0x110000; WS_STAMP=0x200000; WS_SIZE=0x400000
L_XN=0
L_Q=2560
L_H=3328
L_OB=3584
L_FL=4096
L_ML=4160
L_OP=4352
L_TILE=16896
LDS_SIZE=L_TILE+40960
DPPF="row_mask:0xf bank_mask:0xf"

def merge(*lists):
    out=[]; i=0
    while any(i<len(l) for l in lists):
        for l in lists:
            if i<len(l): out.append(l[i])
        i+=1
    return out

def gen(W=2, qtick=11, cons=None, kvflags="nt", wflags="", stamps=0, hprio=2, sleep=1, pace=8, noround=0):
    G=8; S=16; NIT=8
    if cons is None:
        cons={11:{11:[[0,1,2,3]],12:[[4,5,6,7],"sm"],13:[8,9,10,11,12,13],14:[14],15:[15]},
              9:{9:[[0,1]],10:[[2,3,4,5]],11:[[6,7],"sm",8,9],12:[10,11,12],13:[13],14:[14],15:[15]},
              12:{12:[[0,1,2,3],[4,5]],13:[[6,7],"sm",8,9,10],14:[11,12,13,14],15:[15]},
              13:{13:[[0,1,2,3],[4,5,6,7],"sm"],14:[8,9,10,11,12,13,14],15:[15]},
              }[qtick]
    a=Asm()
    a(HDR.rstrip("\n"))
    a(f"; @launch grid=(256,1,1) block=(320,1,1) lds={LDS_SIZE}")
    a('.amdgcn_target "amdgcn-amd-amdhsa--gfx950"',".text",f".globl {KN}",".p2align 8",f".type {KN},@function",f"{KN}:")
    srd=lambda r: f"s[{r}:{r+3}]"
    sWAVE,sH,sS,sT0,sT1,sT2=3,36,37,42,43,44
    sWS=24
    def stamp(k):
        if stamps: a(f"s_memrealtime s[{64+2*k}:{65+2*k}]")
    def dump_stamps(n):
        if not stamps: return
        a("s_waitcnt lgkmcnt(0)")
        a(f"s_mul_i32 s{sT0}, s2, 5",f"s_add_u32 s{sT0}, s{sT0}, s{sWAVE}",f"s_lshl_b32 s{sT0}, s{sT0}, 7",f"s_add_u32 s{sT0}, s{sT0}, {WS_STAMP}")
        a("v_mov_b32 v1, 0","s_mov_b64 exec, 1")
        for k in range(n):
            a(f"v_mov_b32 v2, s{64+2*k}",f"v_mov_b32 v3, s{65+2*k}",f"buffer_store_dwordx2 v[2:3], v1, {srd(sWS)}, s{sT0} offen offset:{8*k}","s_nop 1")
    def grpred(v,t,op):
        return [f"v_{op}_f32_dpp v{v}, v{v}, v{v} row_ror:8 {DPPF}",f"v_mov_b32 v{t}, v{v}",f"v_permlane16_swap_b32 v{t}, v{v}",f"v_{op}_f32 v{v}, v{t}, v{v}",
                f"v_mov_b32 v{t}, v{v}",f"v_permlane32_swap_b32 v{t}, v{v}",f"v_{op}_f32 v{v}, v{t}, v{v}"]
    def rnd(v): return [f"v_cvt_pk_bf16_f32 v{v}, v{v}, v{v}",f"v_and_b32 v{v}, 0xffff0000, v{v}"]
    a("s_cmp_ge_u32 s2, 256","s_cbranch_scc1 L_end")
    if stamps:
        for k in range(16): a(f"s_mov_b64 s[{64+2*k}:{65+2*k}], 0")
    stamp(0)
    sK,sV=8,12
    a(f"s_load_dwordx2 s[{sK}:{sK+1}], s[0:1], 8",f"s_load_dwordx2 s[{sV}:{sV+1}], s[0:1], 16",f"s_load_dwordx2 s[{sWS}:{sWS+1}], s[0:1], 80")
    a("v_lshrrev_b32 v1, 6, v0",f"s_mov_b32 s{sWS+2}, {WS_SIZE}",f"v_readfirstlane_b32 s{sWAVE}, v1",f"s_mov_b32 s{sWS+3}, 0x20000")
    a(f"s_and_b32 s{sT0}, s2, 7",f"s_lshr_b32 s{sH}, s2, 6",f"s_lshl_b32 s{sT1}, s{sT0}, 2",f"s_add_u32 s{sH}, s{sH}, s{sT1}",f"s_bfe_u32 s{sS}, s2, 0x30003")
    a(f"s_cmp_eq_u32 s{sWAVE}, 0","s_cbranch_scc1 L_helper")
    sKo,sVo,sIT,sST=38,39,40,41
    vL,vKo,vQa,vM=1,2,3,4
    vQ=8; vSC=20; vACC=28; vMX=40; vLS=41; vPo=42; vT=43; vA=48; vRING=64
    for r in (sK,sV): a(f"s_mov_b32 s{r+2}, 201326592",f"s_mov_b32 s{r+3}, 0x20000")
    a(f"v_and_b32 v{vL}, 63, v0",f"v_bfe_u32 v{vT}, v0, 3, 3",f"v_and_b32 v{vQa}, 7, v0",f"v_lshlrev_b32 v{vQa}, 4, v{vQa}",f"s_movk_i32 s{sT1}, 384",f"v_mad_u32_u24 v{vKo}, v{vT}, s{sT1}, v{vQa}")
    a(f"s_lshl_b32 s{sT0}, s{sH}, 8",f"s_add_u32 s{sT0}, s{sT0}, s{sS}",f"s_lshl_b32 s{sT0}, s{sT0}, 2",f"s_add_u32 s{sT0}, s{sT0}, s{sWAVE}",f"s_sub_u32 s{sT0}, s{sT0}, 1")
    a(f"s_mul_i32 s{sKo}, s{sT0}, 3072",f"s_mov_b32 s{sVo}, s{sKo}",f"s_mov_b32 s{sST}, 98304",f"s_mov_b32 s{sIT}, 0")
    slot=lambda n: vRING+12*(n%S)
    def ld_kv(n):
        isK=(n%16)<G
        r=slot(n); sr=sK if isK else sV; so=sKo if isK else sVo
        for t in range(3): a(f"buffer_load_dwordx4 v[{r+4*t}:{r+4*t+3}], v{vKo}, {srd(sr)}, s{so} offen offset:{128*t} {kvflags}")
        a(f"s_add_u32 s{so}, s{so}, s{sST}")
    a("s_waitcnt lgkmcnt(0)")
    for n in range(W): ld_kv(n)
    stamp(1)
    a(f"v_and_b32 v{vT}, 1, v{vL}",f"v_cmp_eq_u32 vcc, 1, v{vT}","v_mov_b32 v8, 0xffff","v_mov_b32 v9, 0xffff0000","v_cndmask_b32 v8, v8, v9, vcc")
    a(f"v_bfe_u32 v{vT}, v{vL}, 1, 2")
    for r in range(4): a(f"v_cmp_eq_u32 vcc, {r}, v{vT}",f"v_cndmask_b32 v{vM+r}, 0, v8, vcc")
    a(f"v_lshrrev_b32 v{vT}, 5, v{vL}",f"v_mul_u32_u24 v{vPo}, 768, v{vT}",f"v_lshl_add_u32 v{vPo}, v{vQa}, 1, v{vPo}")
    a(f"v_and_b32 v{vT}, 16, v{vL}",f"s_mul_i32 s{sT0}, s{sWAVE}, 1536",f"s_add_u32 s{sT0}, s{sT0}, {L_OP-1536}",f"v_add3_u32 v{vPo}, v{vPo}, v{vT}, s{sT0}")
    vFl=46; vOne=47
    a(f"s_lshl_b32 s{sT0}, s{sWAVE}, 3",f"s_add_u32 s{sT0}, s{sT0}, {L_ML-8}",f"v_mov_b32 v{vFl}, s{sT0}",f"v_mov_b32 v{vOne}, 1",f"v_mov_b32 v56, {L_FL}")
    def reset():
        for r in range(12): a(f"v_mov_b32 v{vACC+r}, 0")
        a(f"v_mov_b32 v{vMX}, 0xff7fffff",f"v_mov_b32 v{vLS}, 0")
    reset()
    def kstep(n):
        r=slot(n); sc=vSC+n
        L=[f"v_mov_b32 v{sc}, 0"]+[f"v_dot2c_f32_bf16 v{sc}, v{r+i}, v{vQ+i}" for i in range(12)]
        L+=[f"v_add_f32_dpp v{sc}, v{sc}, v{sc} quad_perm:[1,0,3,2] {DPPF}",f"v_add_f32_dpp v{sc}, v{sc}, v{sc} quad_perm:[2,3,0,1] {DPPF}",f"v_add_f32_dpp v{sc}, v{sc}, v{sc} row_half_mirror {DPPF}"]
        return L
    def kround(x,y):
        if noround: return [f"v_mul_f32 v{x}, {SCALE}, v{x}",f"v_mul_f32 v{y}, {SCALE}, v{y}"]
        return [f"v_cvt_pk_bf16_f32 v{y}, v{x}, v{y}",f"v_lshlrev_b32 v{x}, 16, v{y}",f"v_and_b32 v{y}, 0xffff0000, v{y}",f"v_mul_f32 v{x}, {SCALE}, v{x}",f"v_mul_f32 v{y}, {SCALE}, v{y}",
                f"v_cvt_pk_bf16_f32 v{y}, v{x}, v{y}",f"v_lshlrev_b32 v{x}, 16, v{y}",f"v_and_b32 v{y}, 0xffff0000, v{y}"]
    def softmax():
        t0,t1=vT,vT+1
        a(f"v_max3_f32 v{t0}, v{vSC}, v{vSC+1}, v{vMX}")
        for k in range(2,G,2): a(f"v_max3_f32 v{t0}, v{vSC+k}, v{vSC+k+1}, v{t0}")
        a(*grpred(t0,t1,"max"))
        a(f"v_sub_f32 v{t1}, v{vMX}, v{t0}",f"v_mov_b32 v{vMX}, v{t0}",f"v_mul_f32 v{t1}, {LOG2E}, v{t1}",f"v_exp_f32 v{t1}, v{t1}")
        for g in range(G): a(f"v_sub_f32 v{vSC+g}, v{vSC+g}, v{vMX}")
        for g in range(G): a(f"v_mul_f32 v{vSC+g}, {LOG2E}, v{vSC+g}")
        for g in range(G): a(f"v_exp_f32 v{vSC+g}, v{vSC+g}")
        a(f"v_mul_f32 v{vLS}, v{vLS}, v{t1}")
        for k in range(12): a(f"v_mul_f32 v{vACC+k}, v{vACC+k}, v{t1}")
        for g in range(G): a(f"v_add_f32 v{vLS}, v{vLS}, v{vSC+g}",f"v_cvt_pk_bf16_f32 v{vSC+g}, v{vSC+g}, v{vSC+g}")
    def vprep(n):
        g=n-G; A=vA+4*(g&1)
        for r in range(4): a(f"v_and_b32 v{A+r}, v{vSC+g}, v{vM+r}")
    def vstep(n):
        g=n-G; A=vA+4*(g&1); r=slot(n)
        for t in range(3): a(f"v_mfma_f32_16x16x32_bf16 v[{vACC+4*t}:{vACC+4*t+3}], v[{A}:{A+3}], v[{r+4*t}:{r+4*t+3}], v[{vACC+4*t}:{vACC+4*t+3}]")
    a("L_loop:")
    prepped=set()
    for tk in range(16):
        items=cons.get(tk,[])
        if items and isinstance(items[0],int): vprep(items[0]); prepped.add(items[0])
        a(f"s_waitcnt vmcnt({3*(W-1)})")
        m=tk+W
        if m==16:
            a(f"s_cmp_eq_u32 s{sIT}, 3",f"s_cselect_b32 s{sT0}, {31*3145728}, 0",f"s_add_u32 s{sKo}, s{sKo}, s{sT0}",f"s_add_u32 s{sVo}, s{sVo}, s{sT0}")
            a(f"s_cmp_eq_u32 s{sIT}, 7",f"s_cselect_b32 s{sK+2}, 0, s{sK+2}")
        ld_kv(m)
        if tk==qtick:
            a(f"s_cmp_lg_u32 s{sIT}, 0","s_cbranch_scc1 L_noq")
            stamp(2)
            a("s_barrier")
            stamp(3)
            a("L_noq:")
            for t in range(3): a(f"ds_read_b128 v[{vQ+4*t}:{vQ+4*t+3}], v{vQa} offset:{L_Q+128*t}")
            a("s_waitcnt lgkmcnt(0)")
        for it in items:
            if it=="sm": softmax()
            elif isinstance(it,list):
                assert max(it)<=tk
                a(*merge(*[kstep(n) for n in it]))
                a(*merge(*[kround(vSC+n,vSC+n+1) for n in it[::2]]))
            else:
                assert it<=tk
                if it not in prepped: vprep(it)
                vstep(it)
    a(f"s_add_u32 s{sIT}, s{sIT}, 1",f"s_and_b32 s{sT0}, s{sIT}, 3","s_cbranch_scc1 L_loop")
    a(*grpred(vLS,vT,"add"))
    a("s_mov_b32 exec_lo, 0x00ff00ff","s_mov_b32 exec_hi, 0xff00ff00")
    for t in range(3): a(f"ds_write_b128 v{vPo}, v[{vACC+4*t}:{vACC+4*t+3}] offset:{256*t}")
    a("s_mov_b64 exec, 1",f"ds_write_b64 v{vFl}, v[{vMX}:{vLS}]","s_waitcnt lgkmcnt(0)",f"ds_add_u32 v56, v{vOne}","s_mov_b64 exec, -1")
    a(f"s_cmp_eq_u32 s{sIT}, 8","s_cbranch_scc1 L_sdone")
    a(f"v_add_u32 v{vPo}, 6144, v{vPo}",f"v_add_u32 v{vFl}, 32, v{vFl}",f"v_add_u32 v{vQa}, 384, v{vQa}","v_add_u32 v56, 4, v56")
    reset()
    stamp(4)
    a("s_branch L_loop")
    a("L_sdone:")
    stamp(5)
    dump_stamps(6)
    a("s_endpgm")
    a("L_helper:")
    if hprio: a(f"s_setprio {hprio}")
    sX,sWA,sWB,sW2,sDBG,sOUT=4,16,20,96,28,32
    sTAG,sOff,sStr,sU,sSPIN,sB,sRED,sCnt=38,39,40,41,45,46,47,48
    mB1,mB2,mB3=50,52,54
    sK3=56
    a(f"s_load_dwordx2 s[{sX}:{sX+1}], s[0:1], 0")
    a(f"s_cmp_lt_u32 s{sS}, 6",f"s_cselect_b32 s{sT0}, 24, 48",f"s_load_dwordx2 s[{sWA}:{sWA+1}], s[0:1], s{sT0}")
    a(f"s_load_dwordx2 s[{sWB}:{sWB+1}], s[0:1], 32",f"s_load_dwordx2 s[{sW2}:{sW2+1}], s[0:1], 56",f"s_load_dwordx2 s[{sOUT}:{sOUT+1}], s[0:1], 64",f"s_load_dwordx2 s[{sDBG}:{sDBG+1}], s[0:1], 72")
    for r,n in ((sX,2560),(sWB,7864320),(sDBG,256),(sOUT,2560)): a(f"s_mov_b32 s{r+2}, {n}",f"s_mov_b32 s{r+3}, 0x20000")
    a(f"s_mov_b32 s{sWA+3}, 0x20000",f"s_mov_b32 s{sW2+3}, 0x20000")
    a(f"s_and_b32 s{sK3}, s{sH}, 3",f"s_lshr_b32 s{sT0}, s{sH}, 2",f"s_mul_i32 s{sU}, s{sT0}, 3",f"s_add_u32 s{sU}, s{sU}, s{sK3}")
    a(f"s_cmp_lt_u32 s{sK3}, 3",f"s_cselect_b32 s{sW2+2}, 1966080, 0")
    sHf=57
    a(f"s_movk_i32 s{sStr}, 3072")
    a(f"s_cmp_lt_u32 s{sS}, 6",f"s_cselect_b32 s{sWA+2}, 7864320, s{sW2+2}",f"s_cselect_b32 s{sStr}, 12288, s{sStr}","s_cbranch_scc1 L_isq")
    a(f"s_sub_u32 s{sHf}, s{sS}, 6",f"s_lshl_b32 s{sOff}, s{sU}, 7","s_branch L_isq_done")
    a("L_isq:",f"s_cmp_ge_u32 s{sS}, 3",f"s_cselect_b32 s{sHf}, 1, 0",f"s_mul_i32 s{sT0}, s{sHf}, 3",f"s_sub_u32 s{sT0}, s{sS}, s{sT0}",f"s_mul_i32 s{sOff}, s{sH}, 3",f"s_add_u32 s{sOff}, s{sOff}, s{sT0}",f"s_lshl_b32 s{sOff}, s{sOff}, 7")
    a("L_isq_done:")
    a(f"s_mul_i32 s{sT0}, s{sStr}, 320",f"s_mul_i32 s{sT0}, s{sT0}, s{sHf}",f"s_add_u32 s{sOff}, s{sOff}, s{sT0}")
    vXo=1; vD=2
    a(f"v_mul_u32_u24 v{vXo}, 40, v0")
    a("v_lshrrev_b32 v6, 3, v0","v_and_b32 v7, 7, v0","v_and_b32 v8, 2, v6","v_xor_b32 v7, v7, v8","v_lshlrev_b32 v7, 4, v7",f"v_mul_lo_u32 v6, v6, s{sStr}")
    a(f"s_lshl_b32 s{sT0}, s{sStr}, 3",f"s_sub_u32 s{sT0}, s{sT0}, 1024",f"v_add_u32 v{vD}, v6, v7","v_xor_b32 v7, 64, v7",f"v_add3_u32 v{vD+1}, v6, v7, s{sT0}")
    a(f"s_lshl_b32 s{sT0}, s{sT0}, 1",f"v_add_u32 v{vD+2}, s{sT0}, v{vD}",f"v_add_u32 v{vD+3}, s{sT0}, v{vD+1}",f"s_lshl_b32 s{sStr}, s{sStr}, 5")
    a(f"s_mov_b32 m0, {L_TILE}",f"s_mov_b32 s{sT0}, {WS_E}")
    a("s_waitcnt lgkmcnt(0)")
    stamp(1)
    X=8
    a(f"s_load_dword s{sTAG}, s[{sWS}:{sWS+1}], s{sT0}")
    a(f"buffer_load_dwordx4 v[{X}:{X+3}], v{vXo}, {srd(sX)}, 0 offen",f"buffer_load_dwordx4 v[{X+4}:{X+7}], v{vXo}, {srd(sX)}, 0 offen offset:16",f"buffer_load_dwordx2 v[{X+8}:{X+9}], v{vXo}, {srd(sX)}, 0 offen offset:32")
    for i in range(10):
        for k in range(4): a(f"buffer_load_dwordx4 v{vD+k}, {srd(sWA)}, s{sOff} offen offset:{1024*k} {wflags} lds")
        if i<9: a(f"s_addk_i32 m0, 0x1000",f"s_add_u32 s{sOff}, s{sOff}, s{sStr}")
    a(f"s_mov_b32 s{mB1}, 0xcccccccc",f"s_mov_b32 s{mB1+1}, 0xcccccccc",f"s_mov_b32 s{mB2}, 0xf0f0f0f0",f"s_mov_b32 s{mB2+1}, 0xf0f0f0f0",f"s_mov_b32 s{mB3}, 0xff00ff00",f"s_mov_b32 s{mB3+1}, 0xff00ff00")
    a("v_mov_b32 v6, 0","v_mov_b32 v7, 0",f"ds_write_b64 v6, v[6:7] offset:{L_FL}")
    vTR=2
    a("v_lshrrev_b32 v18, 4, v0","v_bfe_u32 v19, v0, 2, 2","v_lshl_add_u32 v20, v18, 3, v19","v_lshlrev_b32 v20, 7, v20","v_and_b32 v21, 3, v0","v_lshl_add_u32 v20, v21, 3, v20")
    a("v_bfe_u32 v21, v0, 3, 2")
    for c in range(4): a(f"v_xor_b32 v22, {c}, v21",f"v_lshl_add_u32 v{vTR+c}, v22, 5, v20")
    vXa=6
    a("v_and_b32 v19, 1, v0","v_mul_u32_u24 v19, 1280, v19",f"s_mul_i32 s{sT0}, s{sHf}, 640","v_lshlrev_b32 v18, 4, v18",f"v_add3_u32 v{vXa}, v19, v18, s{sT0}")
    vL16=7
    a(f"v_lshlrev_b32 v{vL16}, 4, v0")
    a("s_waitcnt vmcnt(40)")
    stamp(2)
    U=20; D_=40; sm=60; t=62; mean=64; rd=66
    for k in range(10): a(f"v_lshlrev_b32 v{U+2*k}, 16, v{X+k}",f"v_and_b32 v{U+2*k+1}, 0xffff0000, v{X+k}")
    def halfsum(v,t):
        a(f"v_add_f32_dpp v{v}, v{v}, v{v} quad_perm:[1,0,3,2] {DPPF}",f"v_add_f32_dpp v{v}, v{v}, v{v} quad_perm:[2,3,0,1] {DPPF}",f"v_add_f32_dpp v{v}, v{v}, v{v} row_half_mirror {DPPF}",f"v_add_f32_dpp v{v}, v{v}, v{v} row_mirror {DPPF}")
        a(f"v_mov_b32 v{t}, v{v}",f"v_permlane16_swap_b32 v{t}, v{v}",f"v_add_f32 v{v}, v{t}, v{v}")
    a(f"v_pk_add_f32 v[{sm}:{sm+1}], v[{U}:{U+1}], v[{U+2}:{U+3}]",f"v_pk_add_f32 v[{t}:{t+1}], v[{U+4}:{U+5}], v[{U+6}:{U+7}]")
    for k in range(4,10,2): a(f"v_pk_add_f32 v[{sm}:{sm+1}], v[{sm}:{sm+1}], v[{U+2*k}:{U+2*k+1}]",f"v_pk_add_f32 v[{t}:{t+1}], v[{t}:{t+1}], v[{U+2*k+2}:{U+2*k+3}]")
    a(f"v_pk_add_f32 v[{sm}:{sm+1}], v[{sm}:{sm+1}], v[{t}:{t+1}]",f"v_add_f32 v{sm}, v{sm}, v{sm+1}")
    halfsum(sm,t)
    a(f"v_mul_f32 v{mean}, {INV640}, v{sm}")
    for k in range(10): a(f"v_pk_add_f32 v[{D_+2*k}:{D_+2*k+1}], v[{U+2*k}:{U+2*k+1}], v[{mean}:{mean+1}] op_sel_hi:[1,0] neg_lo:[0,1] neg_hi:[0,1]")
    a(*rnd(mean))
    a(f"v_pk_mul_f32 v[{sm}:{sm+1}], v[{D_}:{D_+1}], v[{D_}:{D_+1}]",f"v_pk_mul_f32 v[{t}:{t+1}], v[{D_+2}:{D_+3}], v[{D_+2}:{D_+3}]")
    for k in range(2,10,2): a(f"v_pk_fma_f32 v[{sm}:{sm+1}], v[{D_+2*k}:{D_+2*k+1}], v[{D_+2*k}:{D_+2*k+1}], v[{sm}:{sm+1}]",f"v_pk_fma_f32 v[{t}:{t+1}], v[{D_+2*k+2}:{D_+2*k+3}], v[{D_+2*k+2}:{D_+2*k+3}], v[{t}:{t+1}]")
    a(f"v_pk_add_f32 v[{sm}:{sm+1}], v[{sm}:{sm+1}], v[{t}:{t+1}]",f"v_add_f32 v{sm}, v{sm}, v{sm+1}")
    for k in range(10): a(f"v_pk_add_f32 v[{U+2*k}:{U+2*k+1}], v[{U+2*k}:{U+2*k+1}], v[{mean}:{mean+1}] op_sel_hi:[1,0] neg_lo:[0,1] neg_hi:[0,1]")
    halfsum(sm,t)
    for k in range(10): a(f"v_cvt_pk_bf16_f32 v{X+k}, v{U+2*k}, v{U+2*k+1}")
    a(f"v_mul_f32 v{sm}, {INV640}, v{sm}",*rnd(sm),f"v_add_f32 v{sm}, {EPS}, v{sm}",*rnd(sm),f"v_sqrt_f32 v{sm}, v{sm}",*rnd(sm),f"v_rcp_f32 v{rd}, v{sm}")
    for k in range(10): a(f"v_lshlrev_b32 v{U+2*k}, 16, v{X+k}",f"v_and_b32 v{U+2*k+1}, 0xffff0000, v{X+k}")
    for k in range(10): a(f"v_pk_mul_f32 v[{U+2*k}:{U+2*k+1}], v[{U+2*k}:{U+2*k+1}], v[{rd}:{rd+1}] op_sel_hi:[1,0]")
    for k in range(10): a(f"v_cvt_pk_bf16_f32 v{X+k}, v{U+2*k}, v{U+2*k+1}")
    for k in range(5): a(f"ds_write_b64 v{vXo}, v[{X+2*k}:{X+2*k+1}] offset:{L_XN+8*k}")
    a("s_waitcnt lgkmcnt(0)")
    XB=20
    for s_ in range(10): a(f"ds_read_b128 v[{XB+4*s_}:{XB+4*s_+3}], v{vXa} offset:{L_XN+64*s_}")
    stamp(3)
    AC=60
    TB=80
    def trreads(s_):
        B=TB+16*(s_&1)
        a(f"s_waitcnt vmcnt({36-4*s_})")
        for c in range(4):
            for hf in range(2): a(f"ds_read_b64_tr_b16 v[{B+4*c+2*hf}:{B+4*c+2*hf+1}], v{vTR+c} offset:{L_TILE+4096*s_+512*hf}")
    if stamps: a("s_waitcnt lgkmcnt(0)")
    trreads(0)
    for s_ in range(10):
        if s_<9: trreads(s_+1); a("s_waitcnt lgkmcnt(8)")
        else: a("s_waitcnt lgkmcnt(0)")
        B=TB+16*(s_&1)
        for c in range(4):
            cin="0" if s_==0 else f"v[{AC+4*c}:{AC+4*c+3}]"
            a(f"v_mfma_f32_16x16x32_bf16 v[{AC+4*c}:{AC+4*c+3}], v[{B+4*c}:{B+4*c+3}], v[{XB+4*s_}:{XB+4*s_+3}], {cin}")
    sQX=49
    a(f"s_mul_i32 s{sTAG}, s{sTAG}, 1664525",f"s_add_u32 s{sTAG}, s{sTAG}, 1013904223")
    a(f"s_lshl_b32 s{sQX}, s{sH}, 13",f"s_add_u32 s{sQX}, s{sQX}, {WS_QX}",f"s_lshl_b32 s{sT0}, s{sS}, 10",f"s_add_u32 s{sT0}, s{sT0}, s{sQX}",f"s_add_u32 s{sT1}, s{sQX}, 4096")
    a(f"v_mov_b32 v9, s{sTAG}",f"v_mov_b32 v11, s{sTAG}",f"s_mov_b32 s{sSPIN}, 0x100000")
    for c in range(4):
        for r in range(2): a(f"v_cndmask_b32 v{AC+4*c+r}, v{AC+4*c+r}, v{AC+4*c+2+r}, s[{mB3}:{mB3+1}]")
    for c in (0,2):
        for r in range(2): a(f"v_cndmask_b32 v{AC+4*c+r}, v{AC+4*c+r}, v{AC+4*c+4+r}, s[{mB1}:{mB1+1}]")
    a(f"v_cndmask_b32 v8, v{AC}, v{AC+8}, s[{mB2}:{mB2+1}]",f"v_cndmask_b32 v10, v{AC+1}, v{AC+9}, s[{mB2}:{mB2+1}]")
    a(f"buffer_store_dwordx4 v[8:11], v{vL16}, {srd(sWS)}, s{sT0} offen sc1")
    stamp(4)
    vQd=12; vHd=13
    a("v_bfe_u32 v14, v0, 1, 2","v_lshlrev_b32 v14, 5, v14","v_lshrrev_b32 v15, 4, v0","v_lshl_add_u32 v14, v15, 3, v14","v_bfe_u32 v15, v0, 3, 1","v_lshl_add_u32 v14, v15, 2, v14","v_and_b32 v15, 1, v0")
    a(f"v_lshl_add_u32 v{vHd}, v15, 7, v14","v_mul_u32_u24 v15, 384, v15",f"v_add_u32 v{vQd}, v15, v14")
    P=20
    a("L_pollq:")
    for s_ in range(8): a(f"buffer_load_dwordx4 v[{P+4*s_}:{P+4*s_+3}], v{vL16}, {srd(sWS)}, s{sQX if s_<4 else sT1} offen offset:{1024*(s_&3)} sc1")
    a("s_waitcnt vmcnt(0)")
    a(f"v_xor_b32 v14, s{sTAG}, v{P+1}",f"v_xor_b32 v15, s{sTAG}, v{P+3}")
    for s_ in range(1,8): a(f"v_bitop3_b32 v14, v{P+4*s_+1}, s{sTAG}, v14 bitop3:0xbe",f"v_bitop3_b32 v15, v{P+4*s_+3}, s{sTAG}, v15 bitop3:0xbe")
    a("v_or_b32 v14, v14, v15","v_cmp_ne_u32 vcc, 0, v14","s_cbranch_vccz L_pollq_ok")
    a(f"s_sub_u32 s{sSPIN}, s{sSPIN}, 1","s_cbranch_scc0 L_pollq","s_endpgm")
    a("L_pollq_ok:")
    stamp(5)
    for t_ in range(3): a(f"v_add_f32 v{P+4*t_}, v{P+4*t_}, v{P+4*t_+12}",f"v_add_f32 v{P+4*t_+2}, v{P+4*t_+2}, v{P+4*t_+14}")
    for t_ in range(3): a(f"v_cvt_pk_bf16_f32 v{P+4*t_}, v{P+4*t_}, v{P+4*t_+2}",f"ds_write_b32 v{vQd}, v{P+4*t_} offset:{L_Q+128*t_}")
    a("s_waitcnt lgkmcnt(0)","s_barrier")
    stamp(6)
    a(f"v_add_f32 v{P+24}, v{P+24}, v{P+28}",f"v_add_f32 v{P+26}, v{P+26}, v{P+30}",f"v_maximum3_f32 v{P+24}, v{P+24}, 0, 0",f"v_maximum3_f32 v{P+26}, v{P+26}, 0, 0")
    a(f"v_cvt_pk_bf16_f32 v{P+24}, v{P+24}, v{P+26}",f"ds_write_b32 v{vHd}, v{P+24} offset:{L_H}")
    vW=14
    for i in range(5):
        a(f"v_add_u32 v19, {64*i}, v0","v_mul_u32_u24 v20, 6554, v19","v_lshrrev_b32 v20, 16, v20","v_mul_u32_u24 v21, 10, v20","v_sub_u32 v21, v19, v21","v_mul_u32_u24 v20, 1280, v20",f"v_lshl_add_u32 v{vW+i}, v21, 4, v20")
    a(f"s_mul_i32 s{sT0}, s{sS}, 160",f"s_mul_i32 s{sOff}, s{sH}, {192*1280}",f"s_add_u32 s{sOff}, s{sOff}, s{sT0}",f"s_mul_i32 s{sT1}, s{sU}, {64*1280}",f"s_add_u32 s{sT1}, s{sT1}, s{sT0}")
    a(f"s_mov_b32 m0, {L_TILE+192*160}",f"s_mov_b32 s{sCnt}, 2")
    a("L_dma2:")
    for i in range(5): a(f"s_waitcnt vmcnt({pace-1})",f"buffer_load_dwordx4 v{vW+i}, {srd(sW2)}, s{sT1} offen {wflags} lds","s_addk_i32 m0, 0x400")
    a(f"s_add_u32 s{sT1}, s{sT1}, {32*1280}",f"s_sub_u32 s{sCnt}, s{sCnt}, 1",f"s_cmp_lg_u32 s{sCnt}, 0","s_cbranch_scc1 L_dma2")
    a(f"s_mov_b32 m0, {L_TILE}",f"s_mov_b32 s{sCnt}, 6")
    a("L_dmao:")
    for i in range(5): a(f"s_waitcnt vmcnt({pace-1})",f"buffer_load_dwordx4 v{vW+i}, {srd(sWB)}, s{sOff} offen {wflags} lds","s_addk_i32 m0, 0x400")
    a(f"s_add_u32 s{sOff}, s{sOff}, {32*1280}",f"s_sub_u32 s{sCnt}, s{sCnt}, 1",f"s_cmp_lg_u32 s{sCnt}, 0","s_cbranch_scc1 L_dmao")
    vYo=1; sO=57; sYo=58
    a("v_bfe_u32 v19, v0, 1, 3","v_lshlrev_b32 v19, 6, v19","v_and_b32 v20, 48, v0","v_add_u32 v19, v19, v20","v_and_b32 v20, 1, v0","v_mul_u32_u24 v20, 2560, v20","v_add_u32 v19, v19, v20")
    a("v_and_b32 v20, 15, v0","v_cmp_gt_u32 vcc, 10, v20","v_mov_b32 v20, 0x40000000",f"v_cndmask_b32 v{vYo}, v20, v19, vcc")
    a(f"s_mul_i32 s{sYo}, s{sH}, 5120",f"s_mul_i32 s{sT0}, s{sS}, 320",f"s_add_u32 s{sYo}, s{sYo}, s{sT0}",f"s_add_u32 s{sT2}, s{sYo}, {WS_Z}",f"s_add_u32 s{sYo}, s{sYo}, {WS_Y}")
    a(f"s_lshl_b32 s{sO}, s{sH}, 13",f"s_lshl_b32 s{sT0}, s{sS}, 10",f"s_add_u32 s{sT0}, s{sT0}, s{sO}",f"s_add_u32 s{sT1}, s{sT0}, 0x40000")
    for r in range(4): a(f"v_mov_b32 v{8+r}, -1")
    a(f"buffer_store_dwordx4 v[8:11], v{vL16}, {srd(sWS)}, s{sT0} offen sc1",f"buffer_store_dwordx4 v[8:11], v{vL16}, {srd(sWS)}, s{sT1} offen sc1",f"buffer_store_dwordx4 v[8:11], v{vYo}, {srd(sWS)}, s{sYo} offen sc1")
    vT2=2; vG16=3; vHa=4
    a("v_lshrrev_b32 v19, 4, v0","v_bfe_u32 v20, v0, 2, 2","v_lshl_add_u32 v20, v19, 3, v20","v_mul_u32_u24 v20, 160, v20","v_and_b32 v21, 3, v0",f"v_lshl_add_u32 v{vT2}, v21, 3, v20")
    a(f"v_lshlrev_b32 v{vG16}, 4, v19","v_and_b32 v21, 1, v0",f"v_lshl_add_u32 v{vHa}, v21, 7, v{vG16}")
    a("s_waitcnt vmcnt(0) lgkmcnt(0)")
    for s_ in range(2): a(f"ds_read_b128 v[{20+4*s_}:{23+4*s_}], v{vHa} offset:{L_H+64*s_}")
    for s_ in range(2):
        for c in range(5):
            for hf in range(2):
                r=TB+20*s_+4*c+2*hf
                a(f"ds_read_b64_tr_b16 v[{r}:{r+1}], v{vT2} offset:{L_TILE+(192+32*s_+4*hf)*160+32*c}")
        a("s_waitcnt lgkmcnt(0)")
    for s_ in range(2):
        for c in range(5):
            r=TB+20*s_+4*c; cin="0" if s_==0 else f"v[{AC+4*c}:{AC+4*c+3}]"
            a(f"v_mfma_f32_16x16x32_bf16 v[{AC+4*c}:{AC+4*c+3}], v[{r}:{r+3}], v[{20+4*s_}:{23+4*s_}], {cin}")
    def select5():
        for c in (0,2):
            for r in range(4): a(f"v_cndmask_b32 v{AC+4*c+r}, v{AC+4*c+r}, v{AC+4*c+4+r}, s[{mB1}:{mB1+1}]")
        for r in range(4): a(f"v_cndmask_b32 v{AC+r}, v{AC+r}, v{AC+8+r}, s[{mB2}:{mB2+1}]")
        for r in range(4): a(f"v_cndmask_b32 v{AC+r}, v{AC+r}, v{AC+16+r}, s[{mB3}:{mB3+1}]")
    select5()
    a(f"buffer_store_dwordx4 v[{AC}:{AC+3}], v{vYo}, {srd(sWS)}, s{sT2} offen sc1")
    WO=128
    for s_ in range(6):
        for c in range(5):
            for hf in range(2):
                r=WO+20*s_+4*c+2*hf
                a(f"ds_read_b64_tr_b16 v[{r}:{r+1}], v{vT2} offset:{L_TILE+(32*s_+4*hf)*160+32*c}")
        a("s_waitcnt lgkmcnt(0)")
    a("s_waitcnt vmcnt(0)","v_mov_b32 v8, 1","v_mov_b32 v5, 0","s_mov_b64 exec, 1",f"buffer_atomic_add v8, v5, {srd(sDBG)}, 0 offen sc1","s_mov_b64 exec, -1")
    stamp(7)
    vZero=5; vMLa=6; vMLg=12; vL8=13; vRo=14; vXo2=15
    a(f"v_and_b32 v{vMLa}, 3, v0",f"v_lshlrev_b32 v{vMLa}, 3, v{vMLa}",f"v_and_b32 v8, 7, v0",f"v_lshlrev_b32 v{vMLg}, 10, v8",f"v_lshlrev_b32 v{vL8}, 3, v0")
    a(f"v_lshrrev_b32 v9, 3, v0","v_mul_u32_u24 v9, 5120, v9",f"v_lshl_add_u32 v{vRo}, v8, 4, v9",f"v_lshlrev_b32 v{vXo2}, 3, v8")
    a(f"s_lshr_b32 s{sT0}, s{sH}, 2",f"s_lshl_b32 s{sRED}, s{sS}, 3",f"s_add_u32 s{sRED}, s{sRED}, s{sT0}",f"s_cmp_eq_u32 s{sK3}, 3",f"s_cselect_b32 s{sRED}, s{sRED}, 64")
    a(f"s_mov_b32 s{sB}, 0","v_mov_b32 v17, 0",f"v_mov_b32 v16, v{vL16}")
    vOPa=16
    sEx=60
    a(f"s_mov_b32 s{sEx}, 0x01550155",f"s_mov_b32 s{sEx+1}, 0x01550155")
    R=20
    a("L_batch:")
    a("L_wflag:",f"ds_read_b32 v8, v17 offset:{L_FL}","s_waitcnt lgkmcnt(0)",f"v_readfirstlane_b32 s{sT0}, v8",f"s_cmp_ge_u32 s{sT0}, 4","s_cbranch_scc1 L_wflag_ok")
    a(f"s_sleep {sleep}","s_branch L_wflag")
    a("L_wflag_ok:")
    stamp(8)
    a(f"ds_read_b64 v[8:9], v{vMLa} offset:{L_ML}")
    for p in range(8): a(f"ds_read_b128 v[{R+4*p}:{R+4*p+3}], v{vOPa} offset:{L_OP+768*p}")
    a("s_waitcnt lgkmcnt(0)" if stamps else "s_waitcnt lgkmcnt(8)")
    a(f"v_max_f32_dpp v10, v8, v8 quad_perm:[1,0,3,2] {DPPF}",f"v_max_f32_dpp v10, v10, v10 quad_perm:[2,3,0,1] {DPPF}")
    a("v_sub_f32 v8, v8, v10",f"v_mul_f32 v8, {LOG2E}, v8","v_exp_f32 v8, v8","v_mul_f32 v11, v8, v9")
    a(f"v_add_f32_dpp v11, v11, v11 quad_perm:[1,0,3,2] {DPPF}",f"v_add_f32_dpp v11, v11, v11 quad_perm:[2,3,0,1] {DPPF}")
    a("s_waitcnt lgkmcnt(0)")
    for v in range(4):
        for r in range(0,4,2): a(f"v_pk_add_f32 v[{R+8*v+r}:{R+8*v+r+1}], v[{R+8*v+r}:{R+8*v+r+1}], v[{R+8*v+4+r}:{R+8*v+5+r}]")
    for r in range(4): a(f"v_mul_f32_dpp v{R+r}, v8, v{R+r} quad_perm:[0,0,0,0] {DPPF}")
    for v in range(1,4):
        for r in range(4): a(f"v_fmac_f32_dpp v{R+r}, v8, v{R+8*v+r} quad_perm:[{v},{v},{v},{v}] {DPPF}")
    a(f"v_mov_b32_dpp v{R}, v10 quad_perm:[0,1,2,3] row_mask:0x8 bank_mask:0xf",f"v_mov_b32_dpp v{R+1}, v11 quad_perm:[0,1,2,3] row_mask:0x8 bank_mask:0xf")
    for r in range(4): a(f"v_min_u32 v{R+r}, -2, v{R+r}")
    a(f"s_lshl_b32 s{sT0}, s{sS}, 10",f"s_add_u32 s{sT0}, s{sT0}, s{sO}","s_mov_b32 exec_hi, 0x1ffff")
    a(f"buffer_store_dwordx4 v[{R}:{R+3}], v{vL16}, {srd(sWS)}, s{sT0} offen sc1","s_mov_b32 exec_hi, -1")
    stamp(9)
    a(f"s_cmp_lg_u32 s{sB}, 0","s_cbranch_scc1 L_ctr_ok")
    a("L_ctr:",f"buffer_load_dword v8, v{vZero}, {srd(sDBG)}, 0 offen sc1","s_waitcnt vmcnt(0)",f"v_readfirstlane_b32 s{sT0}, v8",f"s_cmp_ge_u32 s{sT0}, 256","s_cbranch_scc1 L_ctr_ok")
    a("s_sleep 16",f"s_sub_u32 s{sSPIN}, s{sSPIN}, 1","s_cbranch_scc0 L_ctr","s_endpgm")
    a("L_ctr_ok:")
    a(f"s_add_u32 s{sT1}, s{sO}, 4096")
    a("L_poll1:")
    a(f"buffer_load_dwordx2 v[8:9], v{vMLg}, {srd(sWS)}, s{sO} offen offset:768 sc1","s_mov_b32 exec_hi, 0xffff")
    for s_ in range(8): a(f"buffer_load_dwordx4 v[{R+4*s_}:{R+4*s_+3}], v{vL16}, {srd(sWS)}, s{sO if s_<4 else sT1} offen offset:{1024*(s_&3)} sc1")
    a("s_waitcnt vmcnt(0)")
    a(f"v_max3_u32 v10, v8, v9, v{R}",f"v_max3_u32 v11, v{R+1}, v{R+2}, v{R+3}")
    for k in range(4,32,4): a(f"v_max3_u32 v10, v{R+k}, v{R+k+1}, v10",f"v_max3_u32 v11, v{R+k+2}, v{R+k+3}, v11")
    a("v_max_u32 v10, v10, v11","v_cmp_eq_u32 vcc, -1, v10","s_mov_b32 exec_hi, -1","s_cbranch_vccz L_poll1_ok")
    a(f"s_sub_u32 s{sSPIN}, s{sSPIN}, 1","s_cbranch_scc0 L_poll1","s_endpgm")
    a("L_poll1_ok:")
    stamp(10)
    a(f"v_max_f32_dpp v10, v8, v8 quad_perm:[1,0,3,2] {DPPF}",f"v_max_f32_dpp v10, v10, v10 quad_perm:[2,3,0,1] {DPPF}",f"v_max_f32_dpp v10, v10, v10 row_half_mirror {DPPF}")
    a("v_sub_f32 v8, v8, v10",f"v_mul_f32 v8, {LOG2E}, v8","v_exp_f32 v8, v8","v_mul_f32 v11, v8, v9")
    sumL=[f"v_add_f32_dpp v11, v11, v11 quad_perm:[1,0,3,2] {DPPF}",f"v_add_f32_dpp v11, v11, v11 quad_perm:[2,3,0,1] {DPPF}",f"v_add_f32_dpp v11, v11, v11 row_half_mirror {DPPF}","v_rcp_f32 v11, v11"]
    for r in range(4): a(f"v_mul_f32_dpp v{R+r}, v8, v{R+r} row_newbcast:0 {DPPF}")
    for s_ in range(1,8):
        for r in range(4): a(f"v_fmac_f32_dpp v{R+r}, v8, v{R+4*s_+r} row_newbcast:{s_} {DPPF}")
        if s_-1<len(sumL): a(sumL[s_-1])
    for r in range(4): a(f"v_mul_f32 v{R+r}, v{R+r}, v11")
    a(f"v_cvt_pk_bf16_f32 v{R}, v{R}, v{R+1}",f"v_cvt_pk_bf16_f32 v{R+1}, v{R+2}, v{R+3}",f"ds_write_b64 v{vL8}, v[{R}:{R+1}] offset:{L_OB}","s_waitcnt lgkmcnt(0)")
    for s_ in range(6): a(f"ds_read_b128 v[{R+4*s_}:{R+4*s_+3}], v{vG16} offset:{L_OB+64*s_}")
    for s_ in range(6):
        a(f"s_waitcnt lgkmcnt({5-s_})")
        for c in range(5):
            r=WO+20*s_+4*c; cin="0" if s_==0 else f"v[{AC+4*c}:{AC+4*c+3}]"
            a(f"v_mfma_f32_16x16x32_bf16 v[{AC+4*c}:{AC+4*c+3}], v[{r}:{r+3}], v[{R+4*s_}:{R+4*s_+3}], {cin}")
    select5()
    for r in range(4): a(f"v_min_u32 v{AC+r}, -2, v{AC+r}")
    a(f"s_mov_b64 exec, s[{sEx}:{sEx+1}]",f"buffer_store_dwordx4 v[{AC}:{AC+3}], v{vYo}, {srd(sWS)}, s{sYo} offen sc1","s_mov_b64 exec, -1")
    stamp(11)
    a(f"s_cmp_lt_u32 s{sRED}, 20","s_cbranch_scc0 L_nored")
    a(f"s_mul_i32 s{sT2}, s{sB}, 20",f"s_add_u32 s{sT2}, s{sT2}, s{sRED}",f"s_lshl_b32 s{sT0}, s{sT2}, 7",f"s_lshl_b32 s{sT2}, s{sT2}, 6",f"s_add_u32 s{sT1}, s{sT0}, {WS_Z}",f"s_add_u32 s{sT0}, s{sT0}, {WS_Y}")
    Z=R+16; XX=R+32
    for k in range(4): a(f"buffer_load_dwordx4 v[{Z+4*k}:{Z+4*k+3}], v{vRo}, {srd(sWS)}, s{sT1} offen sc1",f"s_add_u32 s{sT1}, s{sT1}, 40960")
    a(f"buffer_load_dwordx2 v[{XX}:{XX+1}], v{vXo2}, {srd(sX)}, s{sT2} offen")
    T=R+36
    def red(regs):
        for v in regs: a(f"v_add_f32_dpp v{v}, v{v}, v{v} row_ror:8 {DPPF}")
        for sw in ("16","32"):
            for i,v in enumerate(regs): a(f"v_mov_b32 v{T+i}, v{v}")
            for i,v in enumerate(regs): a(f"v_permlane{sw}_swap_b32 v{T+i}, v{v}")
            for i,v in enumerate(regs): a(f"v_add_f32 v{v}, v{T+i}, v{v}")
    def sum4(B):
        for r in range(0,8,2): a(f"v_pk_add_f32 v[{B+r}:{B+r+1}], v[{B+r}:{B+r+1}], v[{B+8+r}:{B+9+r}]")
        for r in range(0,4,2): a(f"v_pk_add_f32 v[{B+r}:{B+r+1}], v[{B+r}:{B+r+1}], v[{B+4+r}:{B+5+r}]")
        red([B+r for r in range(4)])
        a(*merge(*[rnd(B+r) for r in range(4)]))
    def yloads():
        a(f"s_mov_b32 s{sT1}, s{sT0}")
        for k in range(4): a(f"buffer_load_dwordx4 v[{R+4*k}:{R+4*k+3}], v{vRo}, {srd(sWS)}, s{sT1} offen sc1",f"s_add_u32 s{sT1}, s{sT1}, 40960")
    yloads()
    a("s_waitcnt vmcnt(4)")
    sum4(Z)
    XF=Z+4
    a(f"v_lshlrev_b32 v{XF}, 16, v{XX}",f"v_and_b32 v{XF+1}, 0xffff0000, v{XX}",f"v_lshlrev_b32 v{XF+2}, 16, v{XX+1}",f"v_and_b32 v{XF+3}, 0xffff0000, v{XX+1}")
    a("L_poll2:","s_waitcnt vmcnt(0)")
    a(f"v_max3_u32 v10, v{R}, v{R+1}, v{R+2}",f"v_max3_u32 v11, v{R+3}, v{R+4}, v{R+5}")
    for k in range(6,14,4): a(f"v_max3_u32 v10, v{R+k}, v{R+k+1}, v10",f"v_max3_u32 v11, v{R+k+2}, v{R+k+3}, v11")
    a(f"v_max3_u32 v10, v{R+14}, v{R+15}, v10","v_max_u32 v10, v10, v11","v_cmp_eq_u32 vcc, -1, v10","s_cbranch_vccz L_poll2_ok")
    yloads()
    a(f"s_sub_u32 s{sSPIN}, s{sSPIN}, 1","s_cbranch_scc0 L_poll2","s_endpgm")
    a("L_poll2_ok:")
    stamp(12)
    sum4(R)
    for r in range(4): a(f"v_add_f32 v{R+r}, v{XF+r}, v{R+r}")
    a(*merge(*[rnd(R+r) for r in range(4)]))
    for r in range(4): a(f"v_add_f32 v{R+r}, v{R+r}, v{Z+r}")
    a(f"v_cvt_pk_bf16_f32 v{R}, v{R}, v{R+1}",f"v_cvt_pk_bf16_f32 v{R+1}, v{R+2}, v{R+3}")
    a("s_mov_b64 exec, 0xff",f"buffer_store_dwordx2 v[{R}:{R+1}], v{vXo2}, {srd(sOUT)}, s{sT2} offen","s_mov_b64 exec, -1")
    a("L_nored:")
    stamp(13)
    a(f"s_cmp_lg_u32 s{sB}, 0","s_cbranch_scc1 L_hdone")
    a(f"s_cmp_lg_u32 s{sRED}, 0","s_cbranch_scc1 L_nobump")
    a(f"v_mov_b32 v8, s{sTAG}",f"s_mov_b32 s{sT0}, {WS_E}","s_mov_b64 exec, 1",f"buffer_store_dword v8, v{vZero}, {srd(sWS)}, s{sT0} offen sc1","s_mov_b64 exec, -1")
    a("L_nobump:")
    a(f"s_mov_b32 s{sB}, 1","v_mov_b32 v17, 4",f"s_add_u32 s{sO}, s{sO}, 0x40000",f"s_lshl_b64 s[{sEx}:{sEx+1}], s[{sEx}:{sEx+1}], 1")
    a(f"v_add_u32 v{vOPa}, 6144, v{vOPa}",f"v_add_u32 v{vMLa}, 32, v{vMLa}","s_branch L_batch")
    a("L_hdone:")
    dump_stamps(14)
    a("L_end:","s_endpgm")
    a('.section .rodata,"a"',".p2align 6",f".amdhsa_kernel {KN}")
    a("  .amdhsa_next_free_vgpr 256","  .amdhsa_next_free_sgpr 100","  .amdhsa_accum_offset 256","  .amdhsa_group_segment_fixed_size 0","  .amdhsa_kernarg_size 88")
    a("  .amdhsa_user_sgpr_count 2","  .amdhsa_user_sgpr_kernarg_segment_ptr 1","  .amdhsa_system_sgpr_workgroup_id_x 1","  .amdhsa_float_denorm_mode_32 3",".end_amdhsa_kernel")
    return a.finalize()
if __name__=="__main__":
    kw=json.loads(sys.argv[1]) if len(sys.argv)>1 else {}
    sys.stdout.write(gen(**kw))
```

```python
import sys,re
KN = "parallel_sum__mha_block_cached__dense_activation_relu__decode_kernel"
src=open(sys.argv[1]).read(); thr=float(sys.argv[2])
m=re.search(r"; @launch (grid=\S+ block=\S+ lds=\d+)\n",src)
lines=f"; @launch kernel={KN} {m.group(1)}\n; @launch kernel=probe_kernel grid=(1,1,1) block=(1024,1,1) lds=64\n"
src=src.replace(m.group(0),lines)
W=[(14,30),(29,37),(37,45),(46,60),(63,69),(69,77),(78,92),(96,120)]
body="""
    s_cmp_ge_u32 s2, 1
    s_cbranch_scc1 LP_end
    s_load_dwordx2 s[8:9], s[0:1], 80
    s_mov_b32 s10, 0x400000
    s_mov_b32 s11, 0x20000
    s_mov_b32 s3, 0x300000
    v_lshlrev_b32 v1, 9, v0
    v_mov_b32 v2, 0
    v_and_b32 v3, 15, v0
    v_lshlrev_b32 v3, 2, v3
    ds_write_b32 v3, v2
    s_waitcnt lgkmcnt(0)
    s_barrier
"""
for i,(a,b) in enumerate(W):
    body+=f"""    buffer_load_dword v6, v1, s[8:11], s3 offen offset:{4*a}
    buffer_load_dword v7, v1, s[8:11], s3 offen offset:{4*b}
    s_waitcnt vmcnt(0)
    v_sub_u32 v7, v7, v6
    ds_add_u32 v2, v7 offset:{4*i}
"""
body+="""    s_waitcnt lgkmcnt(0)
    s_barrier
    s_mov_b32 s14, 0
"""
for i,(a,b) in enumerate(W):
    body+=f"""    ds_read_b32 v7, v2 offset:{4*i}
    s_waitcnt lgkmcnt(0)
    v_readfirstlane_b32 s15, v7
    s_nop 3
    s_cmp_gt_u32 s15, {int(thr/10*1024*(b-a))}
    s_cselect_b32 s15, {2000<<i}, 0
    s_add_u32 s14, s14, s15
"""
body+="""    s_memrealtime s[16:17]
    s_waitcnt lgkmcnt(0)
LP_spin:
    s_memrealtime s[18:19]
    s_waitcnt lgkmcnt(0)
    s_sub_u32 s15, s18, s16
    s_cmp_lt_u32 s15, s14
    s_cbranch_scc1 LP_spin
LP_end:
    s_endpgm
"""
src=src.replace('.section .rodata,"a"','.globl probe_kernel\n.p2align 8\n.type probe_kernel,@function\nprobe_kernel:'+body+'.section .rodata,"a"')
src+=""".p2align 6
.amdhsa_kernel probe_kernel
  .amdhsa_next_free_vgpr 8
  .amdhsa_next_free_sgpr 32
  .amdhsa_accum_offset 8
  .amdhsa_group_segment_fixed_size 0
  .amdhsa_kernarg_size 88
  .amdhsa_user_sgpr_count 2
  .amdhsa_user_sgpr_kernarg_segment_ptr 1
  .amdhsa_system_sgpr_workgroup_id_x 1
.end_amdhsa_kernel
"""
sys.stdout.write(src)
```
